```python
import torch

def _softmax(x, axis=-1):
    return torch.softmax(x, dim=axis)
def _gelu(x):
    return torch.nn.functional.gelu(x, approximate="tanh")
def _silu(x):
    return torch.nn.functional.silu(x)
def _sigmoid(x):
    return torch.sigmoid(x)
def _layernorm(x, axis=-1, eps=1e-5):
    m = x.mean(dim=axis, keepdim=True)
    v = x.var(dim=axis, keepdim=True, unbiased=False)
    return (x - m) / torch.sqrt(v + eps)
def _scatter_add(tgt, idx, src, axis=0):
    return tgt.clone().index_add_(axis, idx, src)
def _segment_sum(src, seg, n):
    out = torch.zeros((n,) + src.shape[1:], dtype=src.dtype)
    return out.index_add_(0, seg, src)
def _pad(x, pw):
    flat = tuple(v for pair in reversed(pw) for v in pair)
    return torch.nn.functional.pad(x, flat)

kernel_name = 'gather_scatter__cheap_equivariant_egnn__graph'

def setup_inputs():

    _w = (lambda a: (lambda t: t.to(torch.bfloat16) if t.is_floating_point() else t)(torch.as_tensor(a)))
    N, deg, D, De = 25000, 16, 128, max(0, 1)
    E = N * deg
    return {
        "h": _w((lambda *s: torch.randn(*s, dtype=torch.bfloat16) * 0.2)(N, D)),
        "pos": _w((lambda *s: torch.randn(*s, dtype=torch.bfloat16) * 0.8)(N, 3)),
        "e_attr": _w((lambda *s: torch.randn(*s, dtype=torch.bfloat16) * 0.8)(E, De)),
        "src": _w((lambda lo, hi, *s: torch.randint(lo, hi, s))(0, N, E).to(torch.int64)),
        "dst": _w((lambda lo, hi, *s: torch.randint(lo, hi, s))(0, N, E).to(torch.int64)),
        "w_e": _w(0.1 * (lambda *s: torch.randn(*s, dtype=torch.bfloat16) * 0.8)(2 * D + 1 + De, D)),
        "w_x": _w(0.1 * (lambda *s: torch.randn(*s, dtype=torch.bfloat16) * 0.2)(D, 1)),
        "w_h": _w(0.1 * (lambda *s: torch.randn(*s, dtype=torch.bfloat16) * 0.2)(2 * D, D)),
    }

def reference(h, pos, e_attr, src, dst, w_e, w_x, w_h):
    N, D = h.shape[0], h.shape[1]
    diff = pos[dst] - pos[src]
    dist2 = torch.sum(diff * diff, axis=-1, keepdims=True)
    e_in = torch.concatenate([h[dst], h[src], dist2, e_attr], axis=-1)
    m_ij = _silu(e_in @ w_e)
    coord_scale = m_ij @ w_x
    pos_new = pos + _segment_sum(diff * coord_scale, dst, N)
    m_i = _segment_sum(m_ij, dst, N)
    h_new = h + _silu(torch.concatenate([h, m_i], axis=-1) @ w_h)
    return h_new, pos_new
```

```python
import re

TRANS = ('v_exp_f32', 'v_log_f32', 'v_rcp_f32', 'v_rsq_f32', 'v_sqrt_f32', 'v_sin_f32', 'v_cos_f32',
         'v_rcp_iflag_f32')


def regs_of(tok):
    tok = tok.strip()
    m = re.fullmatch(r'-?(?:abs\()?([vs])(\d+)\)?', tok)
    if m:
        return {(m.group(1), int(m.group(2)))}
    m = re.fullmatch(r'-?([vs])\[(\d+):(\d+)\]', tok)
    if m:
        return {(m.group(1), i) for i in range(int(m.group(2)), int(m.group(3)) + 1)}
    if tok == 'vcc':
        return {('s', 'vcc_lo'), ('s', 'vcc_hi')}
    if tok in ('vcc_lo', 'vcc_hi'):
        return {('s', tok)}
    if tok == 'exec':
        return {('s', 'exec_lo'), ('s', 'exec_hi')}
    if tok in ('exec_lo', 'exec_hi'):
        return {('s', tok)}
    if tok == 'm0':
        return {('s', 'm0')}
    return set()


EXEC = {('s', 'exec_lo'), ('s', 'exec_hi')}
VCC = {('s', 'vcc_lo'), ('s', 'vcc_hi')}


class Ins:
    def __init__(self, text):
        self.text = text
        t = text.split(';')[0].strip()
        self.label = None
        self.op = None
        self.w = set()
        self.r = set()
        self.kind = 'other'
        self.target = None
        self.states = 1
        if not t or t.startswith('.'):
            self.kind = 'dir'
            self.states = 0
            return
        if t.endswith(':'):
            self.kind = 'label'
            self.label = t[:-1]
            self.states = 0
            return
        parts = t.split(None, 1)
        op = parts[0]
        self.op = op
        rest = parts[1] if len(parts) > 1 else ''
        ops = []
        cur = ''
        depth = 0
        for ch in rest:
            if ch in '[(':
                depth += 1
            if ch in '])':
                depth -= 1
            if ch == ',' and depth == 0:
                ops.append(cur.strip())
                cur = ''
            else:
                cur += ch
        if cur.strip():
            ops.append(cur.strip())
        mods = ''
        if ops:
            sp = ops[-1].split(None, 1)
            ops[-1] = sp[0]
            mods = sp[1] if len(sp) > 1 else ''
        self.ops = ops
        self.mods = mods
        R = [regs_of(o) for o in ops]
        self.dpp = ('row_' in mods) or ('quad_perm' in mods) or op.endswith('_dpp')
        if op == 's_nop':
            self.states = int(ops[0], 0) + 1
            self.kind = 'salu'
        elif op.startswith('s_cbranch') or op == 's_branch':
            self.kind = 'branch'
            self.target = ops[0]
        elif op == 's_endpgm':
            self.kind = 'end'
        elif op.startswith('s_load') or op.startswith('s_memtime') or op.startswith('s_memrealtime'):
            self.kind = 'smem'
            self.w = R[0]
            for x in R[1:]:
                self.r |= x
        elif op.startswith('s_'):
            self.kind = 'salu'
            if op.startswith('s_cmp') or op.startswith('s_bitcmp') or op in ('s_waitcnt', 's_barrier', 's_setprio', 's_sleep'):
                for x in R:
                    self.r |= x
            else:
                self.w = set(R[0])
                for x in R[1:]:
                    self.r |= x
                if 'saveexec' in op:
                    self.w |= EXEC
                    self.r |= EXEC
        elif op.startswith('v_mfma'):
            self.kind = 'mfma'
            self.w = R[0]
            self.A, self.B, self.C = R[1], R[2], R[3]
            self.r = R[1] | R[2] | R[3]
            self.passes = 8 if '32x32x16' in op else 4
        elif op.startswith('v_'):
            self.kind = 'valu'
            if op.startswith('v_cmpx'):
                self.w = set(R[0]) | EXEC
                for x in R[1:]:
                    self.r |= x
            elif op.startswith('v_permlane'):
                self.w = R[0] | R[1]
                self.r = R[0] | R[1]
            elif op.startswith('v_add_co') or op.startswith('v_sub_co') or op.startswith('v_addc_co'):
                self.w = R[0] | R[1]
                for x in R[2:]:
                    self.r |= x
            else:
                self.w = set(R[0])
                for x in R[1:]:
                    self.r |= x
                if op.startswith('v_fmac') or op.startswith('v_writelane') or self.dpp or 'dot2c' in op:
                    self.r |= R[0]
        elif op.startswith('ds_'):
            self.kind = 'ds'
            if op.startswith('ds_read') or '_rtn' in op or 'permute' in op:
                self.w = R[0]
                for x in R[1:]:
                    self.r |= x
            else:
                for x in R:
                    self.r |= x
        elif op.startswith('buffer_') or op.startswith('global_'):
            self.kind = 'vmem'
            self.lds = ' lds' in (' ' + mods)
            if 'load' in op and not self.lds:
                self.w = R[0]
                for x in R[1:]:
                    self.r |= x
            else:
                for x in R:
                    self.r |= x
            if self.lds:
                self.r |= {('s', 'm0')}
            self.wide_store = ('store' in op) and ('x3' in op or 'x4' in op)
            if self.wide_store:
                self.data = R[0] if op.startswith('buffer_') else R[1]
        else:
            raise ValueError('unknown instruction: ' + text)


def vset(x):
    return {r for r in x if r[0] == 'v'}


def sset(x):
    return {r for r in x if r[0] == 's'}


def required(p, c):
    n = 0
    pk, ck = p.kind, c.kind
    if pk == 'valu':
        ws = sset(p.w)
        wv = vset(p.w)
        if ws:
            if ck == 'valu':
                if c.op.startswith(('v_readlane', 'v_writelane')) and len(c.ops) > 2 and regs_of(c.ops[2]) & ws:
                    n = max(n, 4)
                if (ws - EXEC) & c.r:
                    n = max(n, 2)
                if ws & EXEC:
                    if c.dpp:
                        n = max(n, 5)
                    if c.op.startswith(('v_readlane', 'v_readfirstlane', 'v_writelane', 'v_permlane')):
                        n = max(n, 4)
                    if c.r & EXEC:
                        n = max(n, 2)
            if ck == 'vmem' and (ws - EXEC) & c.r:
                n = max(n, 5)
            if ck == 'mfma' and ws & EXEC:
                n = max(n, 4)
            if ck == 'salu' and ws & c.r:
                n = max(n, 1)
        if wv:
            if ck == 'valu' and wv & c.r:
                if c.dpp:
                    n = max(n, 2)
                if c.op.startswith(('v_readlane', 'v_readfirstlane')):
                    n = max(n, 1)
                if c.op.startswith('v_permlane'):
                    n = max(n, 2)
                if p.op in TRANS and c.op not in TRANS:
                    n = max(n, 1)
                if 'sdwa' in p.op or ('op_sel' in p.mods and not p.op.startswith('v_pk')):
                    n = max(n, 1)
            if ck == 'mfma' and wv & c.r:
                n = max(n, 2)
    if pk == 'salu' and ('s', 'm0') in p.w and ck == 'vmem' and c.lds:
        n = max(n, 1)
    if pk == 'vmem' and p.wide_store:
        if p.data & c.w:
            n = max(n, 2)
    if pk == 'mfma':
        x = {8: (10, 12, 7), 4: (6, 8, 3)}[p.passes]
        if ck == 'mfma':
            if p.w & c.C:
                if not (p.w == c.C and p.passes == c.passes):
                    n = max(n, x[0])
            if p.w & (c.A | c.B):
                n = max(n, x[1])
            if (p.w & c.w) and not (p.w & c.C):
                n = max(n, x[1])
        elif ck in ('valu', 'vmem', 'ds'):
            if p.w & (c.r | c.w):
                n = max(n, x[1])
            if ck == 'valu' and p.C & c.w:
                n = max(n, x[2])
    return n


MAXD = 13


def pad(lines, verbose=False):
    ins = [Ins(l) for l in lines]
    total = 0
    for _ in range(10):
        labels = {x.label: i for i, x in enumerate(ins) if x.kind == 'label'}
        jumps = {}
        for i, x in enumerate(ins):
            if x.kind == 'branch':
                jumps.setdefault(labels[x.target], []).append(i)

        def preds(i):
            out = []
            if i > 0:
                q = ins[i - 1]
                if not (q.kind == 'end' or (q.kind == 'branch' and q.op == 's_branch')):
                    out.append(i - 1)
            out += jumps.get(i, [])
            return out

        need = {}
        for i, c in enumerate(ins):
            if c.kind in ('dir', 'label', 'end', 'branch'):
                continue
            best = 0
            stack = [(j, 0) for j in preds(i)]
            seen = {}
            while stack:
                j, d = stack.pop()
                if d >= MAXD:
                    continue
                if j in seen and seen[j] <= d:
                    continue
                seen[j] = d
                p = ins[j]
                if p.kind not in ('dir', 'label'):
                    r = required(p, c)
                    if r - d > best:
                        best = r - d
                        why = p.text
                for k in preds(j):
                    stack.append((k, d + p.states))
            if best > 0:
                need[i] = (best, why)
        if not need:
            break
        out = []
        last = -100
        for i, x in enumerate(ins):
            if i in need and i - last > MAXD:
                if verbose:
                    print('pad', need[i][0], 'before', x.text.strip(), ' <- ', need[i][1].strip())
                out.append(Ins('    s_nop %d' % (need[i][0] - 1)))
                total += 1
                last = i
            out.append(x)
        ins = out
        if len(need) and _ == 9:
            return pad([x.text for x in ins], verbose)
    return [x.text for x in ins]


class Asm:
    def __init__(self):
        self.lines = []

    def __call__(self, s):
        for l in s.split('\n'):
            l = l.strip()
            if not l:
                continue
            if l.endswith(':') or l.startswith('.'):
                self.lines.append(l)
            else:
                self.lines.append('    ' + l)

    def c(self, s):
        self.lines.append('    ; ' + s)


def v(a, n=1):
    return f'v{a}' if n == 1 else f'v[{a}:{a + n - 1}]'


def s(a, n=1):
    return f's{a}' if n == 1 else f's[{a}:{a + n - 1}]'
```

```python
from asmlib import v, s
import gen as G
from gen import N, E, NB, CH, NCH, NL2E, NLN2, WS_REC, WS_TAB, WS_WF, WF_CST, WF_WX, WF_SIZE, WS_POSF, srd, scan64, mfma
import sys
OPT = sys.modules['__main__'].OPT if hasattr(sys.modules['__main__'], 'OPT') else G.OPT

S_ = 0
RING = 16384
PT = 81920
MI = 107008
MIS = 272
REC = 133664
CAP = 1760
FLAGS = 161824
LUT = 161856
WXT = 161984
PTILE = 162240
LONGF = 163808
K2_LDS = 163840
HIST = 0
SEGL, SEGC, SEGS = 2048, 4096, 6144
assert PT + NB * 256 == MI and MI + NB * MIS == REC and REC + CAP * 16 == FLAGS

vTID, vLANE = 0, 1
vAQ0, vAQ1, vDMAc, vRecA, vDA0, vDA1, vX2A, vLUTc, vSc, vSA = 2, 3, 4, 5, 6, 7, 8, 9, 10, 11
vStrE, vStrO, vBPslot, vBPc, vOldc, vFslot, vFc, vFp, vTab, vRem, vWx, vT = 12, 13, 14, 15, 16, 17, 18, 19, 20, 21, 22, 23
SEG = 24
Z0 = 32
ACC = 64
D = (128, 144)
EE = 160
M = 176
AQ = 184
BP = 192
I0, I1 = 208, 212
AP = 216
OLD = 222
SEL = 230
vO, vLin = 234, 235
T0, T1, T2, T3 = 236, 237, 238, 239
WXH = 240

sW = 3
sNV, sBin, sN0 = 22, 26, 27
sQ, sREC, sWF, sH, sPOSF, sOUT, sOUTP, sTT = 28, 32, 36, 40, 44, 48, 52, 56
sL, sNU, sU0, sRing = 60, 61, 62, 63
sNF, sNL = 64, 66
sNB, sNFW, sNLW, sNBn, sNew, sNFn, sFlagV, sSlow, sBatch = 68, 69, 70, 71, 72, 73, 74, 75, 76
s256, s272, sT = 77, 78, 79
sMa, sMb, sMM, sMP = 80, 82, 84, 86
sT2 = 23
sLtot = 2

_stamp = [0]


def stamp(a):
    if not OPT.get('stamps'):
        return
    i = _stamp[0]
    _stamp[0] += 1
    assert i < 12
    a('s_memtime s[100:101]')
    a('s_waitcnt lgkmcnt(0)')
    a(f's_mov_b32 s{88 + i}, s100')


def slots_fast():
    out = []
    rk = list(range(56, 64)) + list(range(240, 244))
    for q in range(12):
        k, h = divmod(q, 2)
        out.append(dict(R=32 + 4 * k + 2 * h, rank=rk[q], ad=244 + q, thr=4 * k + h))
    return out


def slots_slow():
    return [dict(R=128 + 2 * h, rank=132 + h, ad=134 + h, thr=h) for h in range(2)]


def hist(a, slots, tag):
    a(f'v_mov_b32 v{vT}, 1')
    for q in slots:
        a(f'v_cmpx_lt_i32 vcc, {q["thr"]}, v{vRem}')
        a(f's_cbranch_execz H_{tag}')
        a(f'v_and_b32 v{q["ad"]}, 0x3f8, v{q["R"] + 1}')
        a(f'ds_add_rtn_u32 v{q["rank"]}, v{q["ad"]}, v{vT} offset:{HIST}')
    a(f'H_{tag}:')
    a('s_mov_b64 exec, -1')


def scatter(a, slots, tag):
    for q in slots:
        a(f'v_cmpx_lt_i32 vcc, {q["thr"]}, v{vRem}')
        a(f's_cbranch_execz SC1_{tag}')
        a(f'ds_read_b32 v{q["ad"]}, v{q["ad"]} offset:{HIST + 4}')
    a(f'SC1_{tag}:')
    a('s_mov_b64 exec, -1')
    a('s_waitcnt lgkmcnt(0)')
    for q in slots:
        a(f'v_cmpx_lt_i32 vcc, {q["thr"]}, v{vRem}')
        a(f's_cbranch_execz SC2_{tag}')
        a(f'v_add_lshl_u32 v{q["ad"]}, v{q["ad"]}, v{q["rank"]}, 4')
        a(f'ds_write_b64 v{q["ad"]}, {v(q["R"], 2)}')
    a(f'SC2_{tag}:')
    a('s_mov_b64 exec, -1')


def z0_gemm(a, extra=None):
    extra = extra or []
    per = -(-len(extra) // 16)
    n = 0
    for k in range(8):
        for j in range(2):
            mfma(a, Z0 + 16 * j, 160 + 4 * k, 64 + (j * 8 + k) * 4, None if k == 0 else Z0 + 16 * j)
            for x in extra[n * per:(n + 1) * per]:
                a(x)
            n += 1


def z0_scale(a):
    a(f's_mov_b32 s{sT}, {NL2E:#x}')
    for i in range(32):
        a(f'v_mul_f32 v{Z0 + i}, s{sT}, v{Z0 + i}')


def end_loads(a):
    a('s_waitcnt vmcnt(0) lgkmcnt(0)')
    a(f's_lshl_b32 s{sT}, s{sW}, 12')
    a(f's_add_u32 s{sT}, s{sT}, 65536')
    for m in range(4):
        a(f's_add_u32 m0, s{sRing}, {m * 1024}')
        a(f's_add_u32 s{sT2}, s{sT}, {m * 1024}')
        a(f'buffer_load_dwordx4 v{vLin}, {s(sWF, 4)}, s{sT2} offen lds')
    for i in range(16):
        if i % 4 == 0:
            a(f's_movk_i32 s{sT}, {(i // 4) * 2048}')
        a(f'buffer_load_dword v{D[1] + i}, v{vO}, {s(sH, 4)}, s{sT} offen offset:{(i % 4) * 256}')


def set_flag(a):
    a(f's_lshl_b32 s{sT}, s{sW}, 2')
    a(f's_add_u32 s{sT}, s{sT}, {FLAGS}')
    a('s_mov_b64 exec, 1')
    a(f'v_mov_b32 v{T0}, s{sT}')
    a(f'v_mov_b32 v{T1}, s{sFlagV}')
    a(f'ds_write_b32 v{T0}, v{T1}')
    a('s_mov_b64 exec, -1')


def bp_load(a, sreg):
    a(f'v_subrev_u32 v{T0}, s{sreg}, v{vBPslot}')
    a(f'v_and_b32 v{T0}, 7, v{T0}')
    a(f'v_add_u32 v{T0}, s{sreg}, v{T0}')
    a(f'v_lshl_add_u32 v{T0}, v{T0}, 8, v{vBPc}')
    for b in range(4):
        a(f'ds_read_b64_tr_b16 {v(BP + 4 * b, 2)}, v{T0} offset:{64 * b}')


def dma_pair(bb):
    return [f's_add_u32 m0, s{sRing}, {bb * 2048 - 64 * bb}',
            f'buffer_load_dwordx4 v{vDA0}, {s(sQ, 4)}, 0 offen offset:{64 * bb} lds',
            f's_add_u32 m0, s{sRing}, {bb * 2048 + 1024 - 64 * bb}',
            f'buffer_load_dwordx4 v{vDA1}, {s(sQ, 4)}, 0 offen offset:{64 * bb} lds']


def mf(d, A, B, C=None):
    c = '0' if C is None else v(C, 16)
    return f'v_mfma_f32_32x32x16_bf16 {v(d, 16)}, {v(A, 4)}, {v(B, 4)}, {c}'


def s_stage(b, first):
    acc = ACC + 16 * b
    return [mf(acc, M, SEG, None if first else acc), mf(acc, M + 4, SEG + 4, acc)]


def s_build():
    return [f'ds_write_b64 v{vSA}, {v(AP + 4, 2)}',
            f'ds_read_b64_tr_b16 {v(SEG, 2)}, v{vStrE}',
            f'ds_read_b64_tr_b16 {v(SEG + 2, 2)}, v{vStrO} offset:512',
            f'ds_read_b64_tr_b16 {v(SEG + 4, 2)}, v{vStrE} offset:1024',
            f'ds_read_b64_tr_b16 {v(SEG + 6, 2)}, v{vStrO} offset:1536',
            f'ds_write_b64 v{vSA}, {v(SEL + 2, 2)}']


def step(a, b, first, has_s, tag):
    Dc, Dn = D[b & 1], D[(b + 1) & 1]
    bn = (b + 1) % 4
    a.c(f'---- step {b} {tag}')
    a('s_waitcnt lgkmcnt(0)')
    if b == 3:
        a(f'v_mad_u32_u16 v{vDA0}, v{vDA0}, s{s256}, v{vDMAc} op_sel:[1,0,0,0]')
        a(f'v_mad_u32_u16 v{vDA1}, v{vDA1}, s{s256}, v{vDMAc} op_sel:[1,0,0,0]')
        a(f's_cmp_ge_u32 s{sNU}, 3')
        a(f's_cselect_b32 s{sQ + 2}, {N * 256}, 0')
    ex = [[] for _ in range(16)]
    d = dma_pair(bn)
    ex[0].append(mf(Dn, AP, BP + 4 * bn))
    ex[1].append(d[0])
    ex[2].append(d[1])
    ex[3].append(d[2])
    ex[4].append(mf(Dn, AQ, I0, Dn))
    ex[5].append(d[3])
    ex[8].append(mf(Dn, AQ + 4, I1, Dn))
    if b == 2:
        ex[6].append(f'ds_read_b128 {v(AP + 2, 4)}, v{vRecA}')
        ex[7].append(f'ds_read2_b32 {v(vDA0, 2)}, v{vX2A} offset0:0 offset1:64')
        ex[9] += [f's_bfe_u32 s{sNFn}, s{sNF}, 0x80008',
                  f's_bfe_u32 s{sT}, s{sNL}, 0x80008']
        ex[10] += [f's_sub_u32 s{sT}, s{sT}, s{sNB}',
                   f's_min_u32 s{sNBn}, s{sNFn}, {NB - 8}']
        ex[11] += [f's_cmp_ge_u32 s{sT}, 8',
                   f's_cselect_b32 s{sNew}, 1, 0']
        ex[12] += [f's_cmp_ge_u32 s{sNU}, 2',
                   f's_cselect_b32 s{sNew}, s{sNew}, 0']
    if b == 0 and has_s:
        ex[9] += [f's_and_b32 s{sNLW}, s{sNL}, 0xff',
                  f's_lshr_b64 {s(sNF, 2)}, {s(sNF, 2)}, 8']
        ex[10] += [f's_lshr_b64 {s(sNL, 2)}, {s(sNL, 2)}, 8',
                   f's_sub_u32 s{sNU}, s{sNU}, 1']
    for i in range(16):
        for x in ex[i]:
            a(x)
        a(f'v_exp_f32 v{EE + i}, v{Dc + i}')
    for i in range(8):
        a(f'v_pk_add_f32 {v(EE + 2 * i, 2)}, {v(EE + 2 * i, 2)}, 1.0 op_sel_hi:[1,0]')
    rx = [[] for _ in range(17)]
    if has_s:
        ss = s_stage((b - 1) % 4, first)
        rx[0].append(ss[0])
        rx[4].append(ss[1])
    if b == 2:
        rx[1] += ['s_waitcnt lgkmcnt(1)',
                  f'v_and_or_b32 v{vT}, v{AP + 3}, 56, v{vLUTc}',
                  f'v_bitop3_b32 v{vSA}, v{AP + 3}, 56, v{vSc} bitop3:0x6a']
        rx[2] += [f'ds_read_b64 {v(AP, 2)}, v{vT}',
                  f'v_add_u32 v{vRecA}, 0x200, v{vRecA}',
                  f'v_add_u32 v{vX2A}, 0x200, v{vX2A}']
    b2 = (b + 2) % 4
    rx[5] += ['s_waitcnt vmcnt(6)', f'ds_read_b128 {v(AQ, 4)}, v{vAQ0} offset:{b2 * 2048}']
    rx[6] += [f'ds_read_b128 {v(AQ + 4, 4)}, v{vAQ1} offset:{b2 * 2048}']
    if b == 0:
        for i, x in enumerate(s_build()):
            rx[8 + i].append(x)
    for i in range(16):
        for x in rx[i]:
            a(x)
        if b == 2 and i == 8:
            a(f's_cmp_eq_u32 s{sNew}, 0')
            a(f's_cbranch_scc1 NOBP_{tag}')
            bp_load(a, sNBn)
            a(f'NOBP_{tag}:')
        a(f'v_rcp_f32 v{EE + i}, v{EE + i}')
    for i in range(8):
        a(f'v_pk_mul_f32 {v(EE + 2 * i, 2)}, {v(EE + 2 * i, 2)}, {v(Dc + 2 * i, 2)}')
    for i in range(8):
        a(f'v_cvt_pk_bf16_f32 v{M + i}, v{EE + 2 * i}, v{EE + 2 * i + 1}')


def flush(a):
    a.c('---- flush window')
    a('s_waitcnt lgkmcnt(0)')
    a(f'v_subrev_u32 v{T0}, s{sNB}, v{vBPslot}')
    a(f'v_subrev_u32 v{T1}, s{sNB}, v{vFslot}')
    a(f'v_and_b32 v{T0}, 7, v{T0}')
    a(f'v_and_b32 v{T1}, 7, v{T1}')
    a(f'v_add_u32 v{T0}, s{sNB}, v{T0}')
    a(f'v_add_u32 v{T1}, s{sNB}, v{T1}')
    a(f'v_mad_u32_u24 v{T0}, v{T0}, s{s272}, v{vOldc}')
    for b in range(4):
        a(f'ds_read_b64_tr_b16 {v(OLD + 2 * b, 2)}, v{T0} offset:{64 * b}')
    for k in range(4):
        a(f'ds_read_b128 {v(EE + 4 * k, 4)}, v{vWx} offset:{32 * k}')
    a(f'v_mad_u32_u24 v{T3}, v{T1}, s{s272}, v{vFp}')
    a(f'v_subrev_u32 v{T2}, s{sNFW}, v{T1}')
    a(f'ds_read_b32 v{vT}, v{T3}')
    a(f's_sub_u32 s{sT}, s{sNLW}, s{sNFW}')
    a(f'v_cmp_ge_u32 vcc, s{sT}, v{T2}')
    a(f'v_mad_u32_u24 v{T1}, v{T1}, s{s272}, v{vFc}')
    a(f's_and_b64 {s(sMa, 2)}, vcc, {s(sMM, 2)}')
    a(f's_and_b64 {s(sMb, 2)}, vcc, {s(sMP, 2)}')
    a('s_waitcnt lgkmcnt(5)')
    for b in range(4):
        a(mf(ACC + 16 * b, OLD + 2 * b, SEL, ACC + 16 * b))
    a(f's_mov_b32 s{sNB}, s{sNBn}')
    a(f's_mov_b32 s{sNFW}, s{sNFn}')
    a('s_waitcnt lgkmcnt(0)')
    for b in range(4):
        acc = ACC + 16 * b
        for j in range(8):
            a(f'v_cvt_pk_bf16_f32 v{acc + j}, v{acc + 2 * j}, v{acc + 2 * j + 1}')
            if j == 5:
                k = 2 * b
                a(mf(D[0], (EE + 4 * k) if k < 4 else (WXH + 4 * (k - 4)), acc, None if k == 0 else D[0]))
            if j == 1 and b > 0:
                k = 2 * b - 1
                a(mf(D[0], (EE + 4 * k) if k < 4 else (WXH + 4 * (k - 4)), acc - 16 + 4, D[0]))
    a(f's_mov_b64 exec, {s(sMa, 2)}')
    a(f'ds_write_b128 v{T1}, {v(ACC, 4)}')
    a('s_mov_b64 exec, -1')
    a(mf(D[0], WXH + 12, ACC + 48 + 4, D[0]))
    a(f's_mov_b64 exec, {s(sMa, 2)}')
    for k in range(1, 8):
        a(f'ds_write_b128 v{T1}, {v(ACC + 16 * (k // 2) + 4 * (k % 2), 4)} offset:{32 * k}')
    a(f's_mov_b64 exec, {s(sMb, 2)}')
    a(f'v_add_f32 v{vT}, v{vT}, v{D[0]}')
    a(f'ds_write_b32 v{T3}, v{vT}')
    set_flag(a)


def gen_k2(a):
    _stamp[0] = 0
    a('k2_kernel:')
    a('s_cmp_ge_u32 s2, 256')
    a('s_cbranch_scc1 K2_END')
    a('s_load_dwordx16 s[4:19], s[0:1], 0')
    a('s_load_dwordx2 s[20:21], s[0:1], 64')
    a('s_load_dwordx2 s[24:25], s[0:1], 80')
    a(f'v_lshrrev_b32 v{T0}, 6, v0')
    a(f'v_and_b32 v{vLANE}, 63, v0')
    a(f'v_readfirstlane_b32 s{sW}, v{T0}')
    a(f's_and_b32 s{sBin}, s2, 7')
    a(f's_lshl_b32 s{sBin}, s{sBin}, 5')
    a(f's_lshr_b32 s{sT}, s2, 3')
    a(f's_add_u32 s{sBin}, s{sBin}, s{sT}')
    a(f's_mul_i32 s{sN0}, s{sBin}, {NB}')
    a(f's_sub_u32 s{sNV}, {N}, s{sN0}')
    a(f's_min_u32 s{sNV}, s{sNV}, {NB}')
    a(f'v_lshrrev_b32 v{T1}, 1, v0')
    a(f'v_lshlrev_b32 v{T2}, 10, v{T1}')
    a(f's_lshl_b32 s{sT}, s{sBin}, 2')
    a(f'v_lshrrev_b32 v24, 4, v{vLANE}')
    a(f's_and_b32 s{sT2}, s{sW}, 3')
    a(f's_lshl_b32 s{sT2}, s{sT2}, 2')
    a(f'v_add_u32 v25, s{sT2}, v24')
    a(f'v_and_b32 v26, 15, v{vLANE}')
    a('v_xor_b32 v25, v25, v26')
    a('v_lshlrev_b32 v25, 4, v25')
    a(f'v_lshl_or_b32 v{T3}, v24, 8, v25')
    a(f'v_lshlrev_b32 v{vLin}, 4, v{vLANE}')
    a(f's_lshl_b32 s{sRing}, s{sW}, 13')
    a(f's_add_u32 s{sRing}, s{sRing}, {RING}')
    a('s_waitcnt lgkmcnt(0)')
    stamp(a)
    srd(a, sTT, 24, WS_TAB, NCH * 1024)
    a(f'buffer_load_dword v{vTab}, v{T2}, {s(sTT, 4)}, s{sT} offen')
    a(f's_lshl_b32 s{sT}, s{sN0}, 8')
    a(f's_lshl_b32 s{sT2}, s{sNV}, 8')
    srd(a, sH, 4, f's{sT}', f's{sT2}')
    srd(a, sOUT, 20, f's{sT}', f's{sT2}')
    srd(a, sWF, 24, WS_WF, WF_SIZE)
    a(f's_lshl_b32 s{sT}, s{sW}, 10')
    for m in range(3):
        a(f's_add_u32 m0, s{sT}, {MI + m * 8192}')
        a(f's_add_u32 s{sT2}, s{sT}, {m * 8192}')
        a(f'buffer_load_dwordx4 v{T3}, {s(sH, 4)}, s{sT2} offen lds')
    a(f's_lshl_b32 s{sT}, s{sW}, 12')
    for m in range(4):
        a(f's_add_u32 m0, s{sT}, {RING + m * 1024}')
        a(f's_add_u32 s{sT2}, s{sT}, {m * 1024}')
        a(f'buffer_load_dwordx4 v{vLin}, {s(sWF, 4)}, s{sT2} offen lds')
    a(f's_mov_b32 s{sT2}, {WF_CST}')
    a(f'buffer_load_dwordx4 v[28:31], v{vLin}, {s(sWF, 4)}, s{sT2} offen')
    a(f's_lshl_b32 s{sT}, s{sN0}, 4')
    a(f's_add_u32 s{sT}, s{sT}, {WS_POSF}')
    a(f's_lshl_b32 s{sT2}, s{sNV}, 4')
    srd(a, sPOSF, 24, f's{sT}', f's{sT2}')
    a(f's_cmp_lg_u32 s{sW}, 0')
    a('s_cbranch_scc1 X1')
    a(f's_mov_b32 m0, {MI + 24576}')
    a(f's_movk_i32 s{sT2}, 24576')
    a(f'buffer_load_dwordx4 v{T3}, {s(sH, 4)}, s{sT2} offen lds')
    a('X1:')
    a(f's_cmp_lg_u32 s{sW}, 1')
    a('s_cbranch_scc1 X2')
    a(f's_mov_b32 m0, {PTILE}')
    a(f'buffer_load_dwordx4 v{vLin}, {s(sPOSF, 4)}, 0 offen lds')
    a('X2:')
    a(f's_cmp_lg_u32 s{sW}, 2')
    a('s_cbranch_scc1 X3')
    a(f's_mov_b32 m0, {PTILE}')
    a(f's_mov_b32 exec_hi, {(1 << (NB - 96)) - 1}')
    a(f'buffer_load_dwordx4 v{vLin}, {s(sPOSF, 4)}, 0 offen offset:1024 lds')
    a('s_mov_b64 exec, -1')
    a('X3:')
    a(f's_cmp_lg_u32 s{sW}, 3')
    a('s_cbranch_scc1 X4')
    a(f's_mov_b32 m0, {WXT}')
    a(f's_mov_b32 s{sT2}, {WF_WX}')
    a('s_mov_b64 exec, 0xffff')
    a(f'buffer_load_dwordx4 v{vLin}, {s(sWF, 4)}, s{sT2} offen lds')
    a('s_mov_b64 exec, -1')
    a('X4:')
    srd(a, sPOSF, 24, WS_POSF, N * 16)
    srd(a, sREC, 24, WS_REC, NCH * CH * 8)
    srd(a, sQ, 24, 0, N * 256)
    a(f's_mul_i32 s{sT}, s{sN0}, 6')
    a(f's_add_u32 s{sT}, s{sT}, {N * 256}')
    srd(a, sOUTP, 20, f's{sT}', 1024)
    a(f's_movk_i32 s{s256}, 256')
    a(f's_movk_i32 s{s272}, {MIS}')
    a(f's_mov_b32 s{sFlagV}, 1')
    a(f's_mov_b32 s{sSlow}, 0')
    a('v_lshlrev_b32 v24, 2, v0')
    a('v_mov_b32 v25, 0')
    a(f'ds_write_b32 v24, v25 offset:{HIST}')
    e, hh = 26, 27
    a(f'v_and_b32 v{e}, 31, v{vLANE}')
    a(f'v_lshrrev_b32 v{hh}, 5, v{vLANE}')
    a(f's_cmp_lg_u32 s{sW}, 4')
    a('s_cbranch_scc1 X5')
    a('s_mov_b64 exec, 0xff')
    a(f'v_lshlrev_b32 v24, 2, v{vLANE}')
    a(f'v_add_u32 v24, {FLAGS}, v24')
    a('ds_write_b32 v24, v25')
    a(f'v_mov_b32 v24, {LONGF}')
    a('ds_write_b32 v24, v25')
    a('s_mov_b64 exec, 0xffff')
    a(f'v_and_b32 v24, 3, v{vLANE}')
    a('v_lshlrev_b32 v24, 4, v24')
    a('v_mov_b32 v32, 0x3f80')
    a('v_mov_b32 v33, 0')
    a('v_lshlrev_b64 v[32:33], v24, v[32:33]')
    a(f'v_add_u32 v24, 4, v{vLANE}')
    a('v_and_b32 v24, 8, v24')
    a('v_cmp_eq_u32 vcc, 0, v24')
    a('v_cndmask_b32 v32, 0, v32, vcc')
    a('v_cndmask_b32 v33, 0, v33, vcc')
    a(f'v_lshlrev_b32 v24, 3, v{vLANE}')
    a(f'v_add_u32 v24, {LUT}, v24')
    a('ds_write_b64 v24, v[32:33]')
    a('s_mov_b64 exec, -1')
    a('X5:')
    a(f'v_lshlrev_b32 v24, 3, v{hh}')
    a(f'v_sub_u32 v24, v{e}, v24')
    a('v_and_b32 v25, 1, v24')
    a('v_lshlrev_b32 v25, 4, v25')
    a('v_mov_b32 v32, 0x3f80')
    a('v_lshlrev_b32 v25, v25, v32')
    a('v_ashrrev_i32 v24, 1, v24')
    for rho in range(4):
        a(f'v_cmp_eq_u32 vcc, {rho}, v24')
        a(f'v_cmp_eq_u32 s[{sMa}:{sMa + 1}], {8 + rho}, v24')
        a(f'v_cndmask_b32 v{I0 + rho}, 0, v25, vcc')
        a(f'v_cndmask_b32 v{I1 + rho}, 0, v25, s[{sMa}:{sMa + 1}]')
    a(f'v_lshrrev_b32 v{vFslot}, 2, v{e}')
    a(f'v_lshlrev_b32 v24, 2, v{hh}')
    a(f'v_sub_u32 v24, v{vFslot}, v24')
    a('v_lshlrev_b32 v25, 4, v24')
    a('v_mov_b32 v33, 0')
    a('v_lshlrev_b64 v[32:33], v25, v[32:33]')
    a('v_cmp_gt_u32 vcc, 4, v24')
    a(f's_mov_b32 s{sMM}, 0x88888888')
    a(f's_mov_b32 s{sMM + 1}, 0x88888888')
    a(f's_and_b64 vcc, vcc, {s(sMM, 2)}')
    a(f'v_cndmask_b32 v{SEL}, 0, v32, vcc')
    a(f'v_cndmask_b32 v{SEL + 1}, 0, v33, vcc')
    a(f'v_mov_b32 v{SEL + 2}, 0')
    a(f'v_mov_b32 v{SEL + 3}, 0')
    for b in range(4):
        a(f'v_mov_b32 v{BP + 4 * b + 3}, 0')
    a(f'v_bfe_u32 v24, v{e}, 2, 2')
    a(f'v_xor_b32 v24, v24, v{hh}')
    a('v_lshlrev_b32 v24, 4, v24')
    a(f'v_lshl_or_b32 v24, v{e}, 6, v24')
    a(f'v_add_u32 v{vAQ0}, s{sRing}, v24')
    a(f'v_xor_b32 v{vAQ1}, 32, v{vAQ0}')
    a(f'v_and_b32 v24, 3, v{vLANE}')
    a(f'v_lshrrev_b32 v25, 4, v{vLANE}')
    a('v_xor_b32 v25, v24, v25')
    a(f'v_lshlrev_b32 v{vDMAc}, 4, v25')
    a(f'v_lshlrev_b32 v25, 6, v{hh}')
    a(f'v_add_u32 v{vLUTc}, {LUT}, v25')
    a(f's_lshl_b32 s{sT}, s{sW}, 11')
    a(f'v_bfe_u32 v25, v{e}, 1, 3')
    a('v_lshlrev_b32 v25, 3, v25')
    a(f'v_lshl_or_b32 v25, v{e}, 6, v25')
    a(f'v_add_u32 v{vSc}, s{sT}, v25')
    r_, g1 = 32, 33
    a(f'v_bfe_u32 v{r_}, v{vLANE}, 2, 2')
    a(f'v_bfe_u32 v{g1}, v{vLANE}, 4, 1')
    a(f'v_lshl_add_u32 v{vBPslot}, v{hh}, 2, v{r_}')
    a(f'v_lshl_or_b32 v25, v{g1}, 2, v24')
    a(f'v_lshrrev_b32 v34, 1, v{vBPslot}')
    a('v_xor_b32 v25, v25, v34')
    a('v_lshlrev_b32 v25, 3, v25')
    a(f'v_lshl_or_b32 v25, v{vBPslot}, 6, v25')
    a(f'v_add_u32 v{vStrE}, s{sT}, v25')
    a(f'v_xor_b32 v{vStrO}, 32, v{vStrE}')
    a(f'v_lshlrev_b32 v25, 5, v{g1}')
    a('v_lshl_or_b32 v34, v24, 3, v25')
    a(f'v_add_u32 v{vBPc}, {PT}, v34')
    a('v_and_b32 v34, 1, v24')
    a('v_lshl_or_b32 v25, v34, 4, v25')
    a('v_lshrrev_b32 v34, 1, v24')
    a('v_lshl_or_b32 v25, v34, 3, v25')
    a(f'v_add_u32 v{vOldc}, {MI}, v25')
    a(f'v_lshlrev_b32 v25, 4, v{hh}')
    a(f'v_add_u32 v{vFc}, {MI}, v25')
    a(f'v_add_u32 v{vWx}, {WXT}, v25')
    a(f'v_lshlrev_b32 v25, 2, v24')
    a(f'v_add_u32 v{vFp}, {MI + 256}, v25')
    a(f's_lshr_b32 s{sT}, s{sW}, 1')
    a(f's_lshl_b32 s{sT}, s{sT}, 13')
    a(f's_and_b32 s{sT2}, s{sW}, 1')
    a(f's_lshl_b32 s{sT2}, s{sT2}, 7')
    a(f's_add_u32 s{sT2}, s{sT2}, s{sT}')
    a(f'v_lshlrev_b32 v25, 10, v{hh}')
    a(f'v_lshl_or_b32 v25, v{e}, 2, v25')
    a(f'v_add_u32 v{vO}, s{sT2}, v25')
    a(f'v_and_b32 v25, 15, v{e}')
    a(f'v_xor_b32 v25, v25, v{hh}')
    a('v_lshlrev_b32 v25, 4, v25')
    a(f'v_lshl_or_b32 v25, v{e}, 8, v25')
    a(f's_add_u32 s{sT}, s{sT}, {MI}')
    a(f'v_add_u32 v{OLD}, s{sT}, v25')
    for k in range(1, 8):
        a(f'v_xor_b32 v{OLD + k}, {k << 5}, v{OLD}')
    a(f's_and_b32 s{sT2}, s{sW}, 1')
    a(f's_lshl_b32 s{sT2}, s{sT2}, 14')
    a(f's_add_u32 s{sT2}, s{sT2}, {RING}')
    a(f'v_add_u32 v{vSA}, s{sT2}, v{vLin}')
    a(f's_movk_i32 s{sT}, {CH}')
    a(f'v_mul_u32_u24 v{T1}, s{sT}, v{T1}')
    a('v_and_b32 v24, 1, v0')
    a('v_lshlrev_b32 v24, 1, v24')
    a('s_waitcnt vmcnt(8)')
    stamp(a)
    a(f'v_lshrrev_b32 v25, 16, v{vTab}')
    a(f'v_sub_u32 v{vRem}, v25, v24')
    a(f'v_and_b32 v25, 0xffff, v{vTab}')
    a(f'v_add3_u32 v25, v25, v24, v{T1}')
    a('v_lshlrev_b32 v25, 3, v25')
    for k in range(6):
        a(f'v_cmpx_lt_i32 vcc, {4 * k}, v{vRem}')
        a('s_or_b32 exec_lo, exec_lo, 1')
        a(f'buffer_load_dwordx4 {v(32 + 4 * k, 4)}, v25, {s(sREC, 4)}, 0 offen offset:{32 * k}')
    a('s_mov_b64 exec, -1')
    a(f's_lshl_b32 s{sT}, s{sW}, 12')
    for m in range(4):
        a(f's_add_u32 m0, s{sT}, {RING + 32768 + m * 1024}')
        a(f's_add_u32 s{sT2}, s{sT}, {32768 + m * 1024}')
        a(f'buffer_load_dwordx4 v{vLin}, {s(sWF, 4)}, s{sT2} offen lds')
    a('s_waitcnt vmcnt(10) lgkmcnt(0)')
    for b in range(4):
        a(f'v_mov_b32 v{BP + 4 * b + 2}, v{28 + b}')
    a('s_barrier')
    stamp(a)
    for k in range(8):
        a(f'ds_read_b128 {v(160 + 4 * k, 4)}, v{OLD + k}')
        a(f'ds_read_b128 {v(64 + 4 * k, 4)}, v{vSA} offset:{k * 1024}')
        a(f'ds_read_b128 {v(96 + 4 * k, 4)}, v{vSA} offset:{8192 + k * 1024}')
        if k >= 3:
            kk = k - 3
            a('s_waitcnt lgkmcnt(9)')
            mfma(a, 128, 160 + 4 * kk, 64 + 4 * kk, None if kk == 0 else 128)
            mfma(a, 144, 160 + 4 * kk, 96 + 4 * kk, None if kk == 0 else 144)
    for kk in range(5, 8):
        a(f's_waitcnt lgkmcnt({3 * (7 - kk)})')
        mfma(a, 128, 160 + 4 * kk, 64 + 4 * kk, 128)
        mfma(a, 144, 160 + 4 * kk, 96 + 4 * kk, 144)
    a(f'v_lshrrev_b32 v25, 16, v{vTab}')
    a('v_cmp_lt_u32 vcc, 24, v25')
    a('s_cmp_eq_u64 vcc, 0')
    a('s_cbranch_scc1 NOLONG')
    a(f'v_mov_b32 v24, {LONGF}')
    a('v_mov_b32 v25, 1')
    a('ds_write_b32 v24, v25')
    a('NOLONG:')
    a('s_waitcnt vmcnt(4)')
    stamp(a)
    hist(a, slots_fast(), 'F')
    a(f's_mov_b32 s{sT}, {NL2E:#x}')
    for i in range(32):
        a(f'v_mul_f32 v{128 + i}, s{sT}, v{128 + i}')
    for i in range(16):
        a(f'v_cvt_pk_bf16_f32 v{128 + i}, v{128 + i}, v{144 + i}')
    a(f'v_add_u32 v24, {PT}, v{vO}')
    a(f's_cmp_ge_u32 s{sW}, 6')
    a('s_cbranch_scc1 PW3')
    for i in range(16):
        a(f'ds_write_b32 v24, v{128 + i} offset:{(8 * (i // 4) + i % 4) * 256}')
    a('s_branch PWD')
    a('PW3:')
    a('s_mov_b32 exec_hi, 0')
    for i in range(NB - 96):
        a(f'ds_write_b32 v24, v{128 + i} offset:{i * 256}')
    a('s_mov_b64 exec, -1')
    a('PWD:')
    a('s_waitcnt vmcnt(0) lgkmcnt(0)')
    a('s_barrier')
    stamp(a)
    a(f'ds_read_b128 v[128:131], v{vLin} offset:{HIST}')
    a(f'v_mov_b32 v24, {LONGF}')
    a('ds_read_b32 v132, v24')
    for k in range(11):
        a(f'ds_read_b128 {v(64 + 4 * k, 4)}, v{vSA} offset:{32768 + k * 1024}')
    a('s_waitcnt lgkmcnt(11)')
    a('v_add_u32 v129, v128, v130')
    a('v_mov_b32 v131, v129')
    scan64(a, 131)
    a(f'v_readfirstlane_b32 s{sSlow}, v132')
    a('v_sub_u32 v133, v131, v129')
    a('v_add_u32 v134, v133, v128')
    a(f'v_add_u32 v136, {REC // 16}, v133')
    a(f'v_add_u32 v137, {REC // 16}, v134')
    a(f'ds_write2_b32 v{vLin}, v136, v137 offset0:1 offset1:3')
    a(f'ds_read2_b32 v[138:139], v{vLin} offset0:17 offset1:19')
    a(f'v_readlane_b32 s{sL}, v131, 63')
    a('s_waitcnt lgkmcnt(4)')
    for k in range(11, 16):
        a(f'ds_read_b128 {v(64 + 4 * k, 4)}, v{vSA} offset:{32768 + k * 1024}')
    for i in range(4):
        a(f'v_mov_b32 v{140 + i}, 0')
    a('v_lshlrev_b32 v24, 4, v0')
    a(f'v_add_u32 v24, {MI}, v24')
    for i in range(3):
        a(f'ds_write_b128 v24, v[140:143] offset:{i * 8192}')
    a(f'v_cmpx_gt_u32 vcc, {(NB * MIS - 3 * 8192) // 16}, v0')
    a(f'ds_write_b128 v24, v[140:143] offset:{3 * 8192}')
    a('s_mov_b64 exec, -1')
    a('v_cmp_lt_u32 vcc, 0, v128')
    a(f'v_cmp_lt_u32 {s(sMa, 2)}, 0, v130')
    a(f's_flbit_i32_b64 s{sT}, vcc')
    a(f's_flbit_i32_b64 s{sT2}, {s(sMa, 2)}')
    a(f's_lshl_b32 s{sT}, s{sT}, 1')
    a(f's_lshl_b32 s{sT2}, s{sT2}, 1')
    a(f's_add_u32 s{sT}, s{sT}, 1')
    a(f's_min_u32 s{sT}, s{sT}, s{sT2}')
    a(f's_sub_u32 s{sNB}, 127, s{sT}')
    a('s_waitcnt lgkmcnt(8)')
    a(f'v_subrev_u32 v138, {REC // 16}, v138')
    a(f'v_subrev_u32 v139, {REC // 16}, v139')
    a(f'v_cmp_gt_u32 vcc, s{sL}, v138')
    a(f'v_cmp_gt_u32 {s(sMa, 2)}, s{sL}, v139')
    a('v_add_u32 v134, -1, v134')
    a('v_add_u32 v135, -1, v131')
    a('v_xor_b32 v134, v134, v138')
    a('v_xor_b32 v135, v135, v139')
    a(f'v_cmp_gt_u32 {s(sMb, 2)}, 32, v134')
    a(f's_and_b64 vcc, vcc, {s(sMb, 2)}')
    a(f'v_cmp_gt_u32 {s(sMb, 2)}, 32, v135')
    a(f's_and_b64 {s(sMa, 2)}, {s(sMa, 2)}, {s(sMb, 2)}')
    a(f's_or_b64 vcc, vcc, {s(sMa, 2)}')
    a('s_and_b32 vcc_hi, vcc_hi, 0x0fffffff')
    a('s_cmp_lg_u64 vcc, 0')
    a(f's_cselect_b32 s{sSlow}, 1, s{sSlow}')
    a(f's_cmp_gt_u32 s{sL}, {CAP}')
    a(f's_cselect_b32 s{sSlow}, 1, s{sSlow}')
    if OPT.get('forceslow'):
        a(f's_mov_b32 s{sSlow}, 1')
    a(f's_cmp_lg_u32 s{sSlow}, 0')
    a('s_cbranch_scc1 SLOW_ENTRY')
    scatter(a, slots_fast(), 'F')
    a(f's_add_u32 s{sT}, s{sL}, 31')
    a(f's_and_b32 s{sT}, s{sT}, -32')
    a(f'v_add_u32 v24, s{sL}, v{vLANE}')
    a(f'v_cmpx_gt_u32 vcc, s{sT}, v24')
    a(f's_lshl_b32 s{sT2}, s{sNB}, 3')
    a(f's_or_b32 s{sT2}, s{sT2}, 0x7f000000')
    a(f'v_mov_b32 v141, s{sT2}')
    a(f'v_add_u32 v24, {REC // 16}, v24')
    a('v_lshlrev_b32 v24, 4, v24')
    a('ds_write_b128 v24, v[140:143]')
    a('s_mov_b64 exec, -1')
    a(f's_mov_b32 s{sL}, s{sT}')
    a('s_waitcnt lgkmcnt(0)')
    a('s_barrier')
    a('AFTER_B3:')
    stamp(a)
    a(f's_lshr_b32 s{sT}, s{sL}, 5')
    a(f's_lshr_b32 s{sNU}, s{sT}, 3')
    a(f's_and_b32 s{sT}, s{sT}, 7')
    a(f's_mul_i32 s{sU0}, s{sNU}, s{sW}')
    a(f's_min_u32 s{sT2}, s{sW}, s{sT}')
    a(f's_add_u32 s{sU0}, s{sU0}, s{sT2}')
    a(f's_cmp_lt_u32 s{sW}, s{sT}')
    a(f's_addc_u32 s{sNU}, s{sNU}, 0')
    a(f's_cmp_eq_u32 s{sNU}, 0')
    a('s_cbranch_scc1 EMPTY_WAVE')
    a(f's_lshl_b32 s{sT}, s{sU0}, 9')
    a(f's_add_u32 s{sT}, s{sT}, {REC}')
    a(f'v_lshrrev_b32 v24, 2, v{vLANE}')
    a('v_lshlrev_b32 v24, 4, v24')
    a(f'v_add3_u32 v{vX2A}, v24, s{sT}, 4')
    a(f'ds_read2_b32 {v(vDA0, 2)}, v{vX2A} offset0:0 offset1:64')
    a(f'v_add_u32 v26, s{sT}, v{vLin}')
    for k in range(4):
        a(f'ds_read_b64 {v(128 + 4 * k, 2)}, v26 offset:{k * 1024}')
    a(f'ds_read2_b32 v[28:29], v{vX2A} offset0:128 offset1:192')
    a(f'v_and_b32 v24, 31, v{vLANE}')
    a(f'v_lshl_add_u32 v{vRecA}, v24, 4, s{sT}')
    a(f'v_add_u32 v{vX2A}, 0x400, v{vX2A}')
    a(f's_mov_b32 s{sQ + 2}, {N * 256}')
    a('s_waitcnt lgkmcnt(5)')
    a(f'v_mad_u32_u16 v{vDA0}, v{vDA0}, s{s256}, v{vDMAc} op_sel:[1,0,0,0]')
    a(f'v_mad_u32_u16 v{vDA1}, v{vDA1}, s{s256}, v{vDMAc} op_sel:[1,0,0,0]')
    for bb in range(4):
        for x in dma_pair(bb):
            a(x)
    a(f's_lshl_b32 s{sT}, s{sW}, 11')
    a(f'v_add_u32 v24, s{sT}, v{vLin}')
    for i in range(4):
        a(f'v_mov_b32 v{T0 + i}, 0')
    a(f'ds_write_b128 v24, {v(T0, 4)}')
    a(f'ds_write_b128 v24, {v(T0, 4)} offset:1024')
    a(f's_lshl_b32 s{sT}, s{sNU}, 5')
    a(f's_mov_b32 s{sT2}, 0x7f000000')
    a('s_waitcnt lgkmcnt(2)')
    a(f'v_mad_u32_u16 v{vDA0}, v28, s{s256}, v{vDMAc} op_sel:[1,0,0,0]')
    a(f'v_mad_u32_u16 v{vDA1}, v29, s{s256}, v{vDMAc} op_sel:[1,0,0,0]')
    for k in range(4):
        X = 129 + 4 * k
        a(f'v_add_u32 v24, {64 * k}, v{vLANE}')
        a(f'v_cmp_gt_u32 vcc, s{sT}, v24')
        a(f'v_cmp_gt_u32 {s(80 + 2 * k, 2)}, s{sT2}, v{X}')
        a(f'v_lshrrev_b32 v25, 16, v{X}')
        a(f'v_lshlrev_b32 v25, 4, v25')
        a(f'v_and_b32 v27, 0x3f8, v{X}')
        a(f's_and_b64 {s(80 + 2 * k, 2)}, {s(80 + 2 * k, 2)}, vcc')
        a(f'v_lshlrev_b32 v27, 1, v27')
        a(f'v_add_u32 v27, {PTILE}, v27')
        a(f's_or_b64 exec, {s(80 + 2 * k, 2)}, 1')
        a(f'buffer_load_dwordx3 {v(144 + 4 * k, 3)}, v25, {s(sPOSF, 4)}, 0 offen')
        a(f'ds_read_b128 {v(240 + 4 * k, 4)}, v27')
        a('s_mov_b64 exec, -1')
    extra = []
    for k in range(4):
        X = 129 + 4 * k
        for hf in range(2):
            u = 2 * k + hf
            for reg, lane in ((sNF, 32 * hf), (sNL, 32 * hf + 31)):
                dst = reg + u // 4
                extra.append(f'v_readlane_b32 s{sT}, v{X}, {lane}')
                extra.append(f's_bfe_u32 s{sT}, s{sT}, 0x70003')
                if u % 4 == 0:
                    extra.append(f's_mov_b32 s{dst}, s{sT}')
                else:
                    extra.append(f's_lshl_b32 s{sT}, s{sT}, {8 * (u % 4)}')
                    extra.append(f's_or_b32 s{dst}, s{dst}, s{sT}')
    a(f's_cmp_lg_u32 s{sSlow}, 0')
    a('s_cbranch_scc1 NOZ0')
    z0_gemm(a, extra)
    a('s_branch Z0D')
    a('NOZ0:')
    for x in extra:
        a(x)
    a('Z0D:')
    a(f's_and_b32 s{sNFW}, s{sNF}, 0xff')
    a(f's_min_u32 s{sNB}, s{sNFW}, {NB - 8}')
    bp_load(a, sNB)
    a(f's_cmp_ge_u32 s{sNU}, 2')
    a(f's_cselect_b32 s{sQ + 2}, {N * 256}, 0')
    stamp(a)
    for k in range(4):
        R0, PS, PD = 128 + 4 * k, 144 + 4 * k, 240 + 4 * k
        a(f's_waitcnt vmcnt({3 - k}) lgkmcnt(4)')
        a(f's_mov_b64 exec, {s(80 + 2 * k, 2)}')
        for c in range(3):
            a(f'v_sub_f32 v{PD + c}, v{PD + c}, v{PS + c}')
        a(f'v_mul_f32 v{PD + 3}, v{PD}, v{PD}')
        a(f'v_fmac_f32 v{PD + 3}, v{PD + 1}, v{PD + 1}')
        a(f'v_fmac_f32 v{PD + 3}, v{PD + 2}, v{PD + 2}')
        a(f'v_cvt_pk_bf16_f32 v{R0 + 2}, v{PD}, v{PD + 1}')
        a(f'v_cvt_pk_bf16_f32 v{R0 + 3}, v{PD + 2}, 1.0')
        a(f'v_cvt_pk_bf16_f32 v{R0}, v{PD + 3}, v{R0}')
        a(f'ds_write_b128 v26, {v(R0, 4)} offset:{k * 1024}')
    a('s_mov_b64 exec, -1')
    a(f'ds_read_b128 {v(AP + 2, 4)}, v{vRecA}')
    a(f'ds_read_b128 {v(AQ, 4)}, v{vAQ0}')
    a(f'ds_read_b128 {v(AQ + 4, 4)}, v{vAQ1}')
    for k in range(4):
        a(f'ds_read_b128 {v(WXH + 4 * k, 4)}, v{vWx} offset:{128 + 32 * k}')
    a(f'v_add_u32 v{vRecA}, 0x200, v{vRecA}')
    a(f's_mov_b32 s{sMM}, 0x88888888')
    a(f's_mov_b32 s{sMM + 1}, 0x88888888')
    a(f's_mov_b32 s{sMP}, 0x77777777')
    a(f's_mov_b32 s{sMP + 1}, 0')
    a(f's_cmp_lg_u32 s{sSlow}, 0')
    a('s_cbranch_scc1 NOZS')
    z0_scale(a)
    a('NOZS:')
    a('s_waitcnt lgkmcnt(4)')
    a(f'v_and_or_b32 v{vT}, v{AP + 3}, 56, v{vLUTc}')
    a(f'v_bitop3_b32 v{vSA}, v{AP + 3}, 56, v{vSc} bitop3:0x6a')
    a(f'ds_read_b64 {v(AP, 2)}, v{vT}')
    for x in dma_pair(0):
        a(x)
    a('s_waitcnt lgkmcnt(0)')
    a(mf(D[0], AP, BP))
    a(mf(D[0], AQ, I0, D[0]))
    a(mf(D[0], AQ + 4, I1, D[0]))
    a(f'ds_read_b128 {v(AQ, 4)}, v{vAQ0} offset:2048')
    a(f'ds_read_b128 {v(AQ + 4, 4)}, v{vAQ1} offset:2048')
    stamp(a)
    step(a, 0, True, False, 'I')
    a('s_branch BODY_F')
    a('FLUSH:')
    flush(a)
    a(f's_cmp_eq_u32 s{sNU}, 0')
    a('s_cbranch_scc1 WAVE_DONE')
    for tag, first in (('F', True), ('C', False)):
        a(f'BODY_{tag}:')
        for b in (1, 2, 3):
            step(a, b, first, True, tag)
        a(f's_cmp_eq_u32 s{sNU}, 1')
        a(f's_cbranch_scc1 TAIL_{tag}')
        step(a, 0, first, True, tag)
        a(f's_cmp_lg_u32 s{sNew}, 0')
        a('s_cbranch_scc1 FLUSH')
        if first:
            pass
        else:
            a('s_branch BODY_C')
    for tag, first in (('F', True), ('C', False)):
        a(f'TAIL_{tag}:')
        for x in s_stage(3, first):
            a(x)
        if first:
            a('s_branch TAIL')
    a('TAIL:')
    stamp(a)
    a(f's_and_b32 s{sNLW}, s{sNL}, 0xff')
    a(f's_mov_b32 s{sNU}, 0')
    end_loads(a)
    a(f's_cmp_eq_u32 s{sW}, 7')
    a('s_cbranch_scc1 FLUSH')
    a(f's_lshl_b32 s{sT}, s{sW}, 2')
    a(f's_add_u32 s{sT}, s{sT}, {FLAGS + 4}')
    a(f'v_mov_b32 v{T0}, s{sT}')
    a(f's_mov_b32 s{sT2}, 0x1000000')
    a('SPIN:')
    a(f'ds_read_b32 v{T1}, v{T0}')
    a('s_waitcnt lgkmcnt(0)')
    a(f'v_readfirstlane_b32 s{sT}, v{T1}')
    a(f's_cmp_eq_u32 s{sT}, s{sFlagV}')
    a('s_cbranch_scc1 FLUSH')
    a(f's_sub_u32 s{sT2}, s{sT2}, 1')
    a('s_cbranch_scc0 SPIN')
    a('s_branch FLUSH')
    a('EMPTY_WAVE:')
    set_flag(a)
    a(f's_cmp_lg_u32 s{sSlow}, 0')
    a('s_cbranch_scc1 EW1')
    z0_gemm(a)
    z0_scale(a)
    a('EW1:')
    end_loads(a)
    a('WAVE_DONE:')
    a('s_waitcnt vmcnt(0) lgkmcnt(0)')
    stamp(a)
    a('s_barrier')
    a(f's_cmp_eq_u32 s{sSlow}, 0')
    a('s_cbranch_scc1 EPI')
    a(f's_add_u32 s{sBatch}, s{sBatch}, 1')
    a(f's_lshl_b32 s{sT}, s{sBatch}, 10')
    a(f's_cmp_lt_u32 s{sT}, s{sLtot}')
    a('s_cbranch_scc1 SLOW_BATCH')
    a('EPI:')
    stamp(a)
    a(f's_lshr_b32 s{sT}, s{sW}, 1')
    a(f's_lshl_b32 s{sT}, s{sT}, 5')
    a(f'v_and_b32 v24, 31, v{vLANE}')
    a(f'v_add_u32 v24, s{sT}, v24')
    a(f'v_mad_u32_u24 v24, v24, s{s272}, v{vFc}')
    a(f's_and_b32 s{sT2}, s{sW}, 1')
    a(f's_lshl_b32 s{sT2}, s{sT2}, 15')
    a(f's_add_u32 s{sT2}, s{sT2}, {RING}')
    a(f'v_add_u32 v25, s{sT2}, v{vLin}')

    def woff(j, k):
        return j * 16384 + (k >> 2) * 8192 + (k & 3) * 1024
    for k in range(8):
        a(f'ds_read_b128 {v(160 + 4 * k, 4)}, v24 offset:{k * 32}')
        a(f'ds_read_b128 {v(64 + 4 * k, 4)}, v25 offset:{woff(0, k)}')
        a(f'ds_read_b128 {v(96 + 4 * k, 4)}, v25 offset:{woff(1, k)}')
        if k >= 3:
            kk = k - 3
            a('s_waitcnt lgkmcnt(9)')
            mfma(a, Z0, 160 + 4 * kk, 64 + 4 * kk, Z0)
            mfma(a, Z0 + 16, 160 + 4 * kk, 96 + 4 * kk, Z0 + 16)
    for kk in range(5, 8):
        a(f's_waitcnt lgkmcnt({3 * (7 - kk)})')
        mfma(a, Z0, 160 + 4 * kk, 64 + 4 * kk, Z0)
        mfma(a, Z0 + 16, 160 + 4 * kk, 96 + 4 * kk, Z0 + 16)
    a(f's_mul_i32 s{sT}, s{sNV}, 3')
    a(f'v_cmpx_gt_u32 vcc, s{sT}, v0')
    a('s_cbranch_execz NOPOS')
    a(f's_movk_i32 s{sT}, 21846')
    a(f'v_mul_u32_u24 v24, s{sT}, v0')
    a('v_lshrrev_b32 v24, 16, v24')
    a('v_mul_u32_u24 v25, 3, v24')
    a('v_sub_u32 v25, v0, v25')
    a('v_lshlrev_b32 v25, 2, v25')
    a(f'v_mad_u32_u24 v26, v24, s{s272}, v25')
    a(f'v_add_u32 v26, {MI + 256}, v26')
    a('v_lshl_add_u32 v27, v24, 4, v25')
    a(f'v_add_u32 v27, {PTILE}, v27')
    a('ds_read_b32 v26, v26')
    a('ds_read_b32 v27, v27')
    a(f's_mov_b32 s{sT}, {NLN2:#x}')
    a('v_lshlrev_b32 v24, 1, v0')
    a('s_waitcnt lgkmcnt(0)')
    a(f'v_fma_f32 v26, v26, s{sT}, v27')
    a('v_cvt_pk_bf16_f32 v26, v26, v26')
    a(f'buffer_store_short v26, v24, {s(sOUTP, 4)}, 0 offen')
    a('NOPOS:')
    a('s_mov_b64 exec, -1')
    TT = 192
    a(f's_mov_b32 s{sT}, {NLN2:#x}')
    for g in range(4):
        regs = [Z0 + 4 * g + r for r in range(4)] + [Z0 + 16 + 4 * g + r for r in range(4)]
        for i, y in enumerate(regs):
            a(f'v_exp_f32 v{TT + i}, v{y}')
        for i in range(4):
            a(f'v_pk_add_f32 {v(TT + 2 * i, 2)}, {v(TT + 2 * i, 2)}, 1.0 op_sel_hi:[1,0]')
        for i in range(8):
            a(f'v_rcp_f32 v{TT + i}, v{TT + i}')
        for r in range(4):
            hreg = D[1] + 4 * g + r
            a(f'v_lshlrev_b32 v{TT + 8 + r}, 16, v{hreg}')
            a(f'v_and_b32 v{TT + 12 + r}, 0xffff0000, v{hreg}')
        for i in range(4):
            a(f'v_pk_mul_f32 {v(TT + 2 * i, 2)}, {v(TT + 2 * i, 2)}, {v(regs[2 * i], 2)}')
        for i in range(8):
            a(f'v_fmac_f32 v{TT + 8 + i}, s{sT}, v{TT + i}')
        a(f's_movk_i32 s{sT2}, {g * 2048}')
        for r in range(4):
            o = TT + 16 + 4 * (g & 1) + r
            a(f'v_cvt_pk_bf16_f32 v{o}, v{TT + 8 + r}, v{TT + 12 + r}')
            a(f'buffer_store_dword v{o}, v{vO}, {s(sOUT, 4)}, s{sT2} offen offset:{r * 256}')
        if g == 0:
            a(f's_cmp_ge_u32 s{sW}, 6')
            a('s_cbranch_scc1 K2_FIN')
    a('K2_FIN:')
    if OPT.get('stamps'):
        stamp(a)
        srd(a, sTT, 24, 0x2000000, 0x100000)
        a(f's_lshl_b32 s{sT}, s{sBin}, 3')
        a(f's_add_u32 s{sT}, s{sT}, s{sW}')
        a(f's_lshl_b32 s{sT}, s{sT}, 6')
        a('s_mov_b64 exec, 1')
        a('v_mov_b32 v24, 0')
        for i in range(12):
            a(f'v_mov_b32 v25, s{88 + i}')
            a(f'buffer_store_dword v25, v24, {s(sTT, 4)}, s{sT} offen offset:{4 * i}')
        a(f's_getreg_b32 s{sT2}, hwreg(HW_REG_HW_ID)')
        a(f'v_mov_b32 v25, s{sT2}')
        a(f'buffer_store_dword v25, v24, {s(sTT, 4)}, s{sT} offen offset:48')
        a(f's_getreg_b32 s{sT2}, hwreg(HW_REG_XCC_ID)')
        a(f'v_mov_b32 v25, s{sT2}')
        a(f'buffer_store_dword v25, v24, {s(sTT, 4)}, s{sT} offen offset:52')
        a(f'v_mov_b32 v25, s{sL}')
        a(f'buffer_store_dword v25, v24, {s(sTT, 4)}, s{sT} offen offset:56')
    a('K2_END:')
    a('s_endpgm')
    gen_slow(a)


def gen_slow(a):
    a('SLOW_ENTRY:')
    a(f's_mov_b32 s{sSlow}, 1')
    a(f's_mov_b32 s{sBatch}, 0')
    a('s_waitcnt lgkmcnt(0)')
    z0_gemm(a)
    z0_scale(a)
    a('s_barrier')
    a('SLOW_BATCH:')
    a(f's_add_u32 s{sFlagV}, s{sBatch}, 1')
    a('v_lshlrev_b32 v24, 2, v0')
    a('v_mov_b32 v25, 0')
    a(f'ds_write_b32 v24, v25 offset:{HIST}')
    a('v_lshrrev_b32 v24, 1, v0')
    a(f's_movk_i32 s{sT}, {CH}')
    a(f'v_and_b32 v26, 0xffff, v{vTab}')
    a(f'v_mad_u32_u24 v26, v24, s{sT}, v26')
    a(f'v_lshrrev_b32 v25, 16, v{vTab}')
    a('v_lshlrev_b32 v24, 2, v24')
    a(f'ds_write_b32 v24, v25 offset:{SEGL}')
    a(f'ds_write_b32 v24, v26 offset:{SEGS}')
    a('s_waitcnt lgkmcnt(0)')
    a('s_barrier')
    a(f'ds_read_b128 v[128:131], v{vLin} offset:{SEGL}')
    a('s_waitcnt lgkmcnt(0)')
    a('v_add_u32 v129, v128, v129')
    a('v_add_u32 v130, v129, v130')
    a('v_add_u32 v131, v130, v131')
    a('v_mov_b32 v132, v131')
    scan64(a, 132)
    a(f'v_readlane_b32 s{sLtot}, v132, 63')
    a('v_sub_u32 v136, v132, v131')
    a('v_add_u32 v137, v136, v128')
    a('v_add_u32 v138, v136, v129')
    a('v_add_u32 v139, v136, v130')
    a(f'ds_write_b128 v{vLin}, v[136:139] offset:{SEGC}')
    a(f's_lshl_b32 s{sT}, s{sBatch}, 10')
    a(f'v_add_u32 v140, s{sT}, v0')
    a('v_add_u32 v141, 0x200, v140')
    a('v_mov_b32 v142, 0')
    a('v_mov_b32 v143, 0')
    for st in (128, 64, 32, 16, 8, 4, 2, 1):
        for h in range(2):
            a(f'v_add_u32 v{144 + h}, {4 * st}, v{142 + h}')
            a(f'ds_read_b32 v{146 + h}, v{144 + h} offset:{SEGC}')
        a('s_waitcnt lgkmcnt(0)')
        for h in range(2):
            a(f'v_cmp_le_u32 vcc, v{146 + h}, v{140 + h}')
            a(f'v_cndmask_b32 v{142 + h}, v{142 + h}, v{144 + h}, vcc')
    for h in range(2):
        a(f'ds_read_b32 v{144 + h}, v{142 + h} offset:{SEGC}')
        a(f'ds_read_b32 v{146 + h}, v{142 + h} offset:{SEGS}')
    a(f'v_mov_b32 v{vRem}, 0')
    a('s_waitcnt lgkmcnt(0)')
    for h in range(2):
        a(f'v_sub_u32 v{144 + h}, v{140 + h}, v{144 + h}')
        a(f'v_add_lshl_u32 v{144 + h}, v{144 + h}, v{146 + h}, 3')
        a(f'v_cmpx_gt_u32 vcc, s{sLtot}, v{140 + h}')
        a(f'v_mov_b32 v{vRem}, {h + 1}')
        a(f'buffer_load_dwordx2 {v(128 + 2 * h, 2)}, v{144 + h}, {s(sREC, 4)}, 0 offen')
    a('s_mov_b64 exec, -1')
    a('s_waitcnt vmcnt(0)')
    hist(a, slots_slow(), 'S')
    a('s_waitcnt lgkmcnt(0)')
    a('s_barrier')
    a(f'ds_read_b128 v[136:139], v{vLin} offset:{HIST}')
    a('s_waitcnt lgkmcnt(0)')
    a('v_add_u32 v137, v136, v138')
    a('v_mov_b32 v139, v137')
    scan64(a, 139)
    a('v_sub_u32 v140, v139, v137')
    a('v_mov_b32_dpp v141, v140 quad_perm:[0,0,0,0] row_mask:0xf bank_mask:0xf')
    a('v_mov_b32_dpp v142, v139 quad_perm:[3,3,3,3] row_mask:0xf bank_mask:0xf')
    a('v_sub_u32 v140, v140, v141')
    a('v_sub_u32 v142, v142, v141')
    a('v_add_u32 v143, 31, v142')
    a('v_and_b32 v143, -32, v143')
    a(f'v_and_b32 v144, 3, v{vLANE}')
    a('v_cmp_eq_u32 vcc, 0, v144')
    a('v_cndmask_b32 v144, 0, v143, vcc')
    scan64(a, 144)
    a(f'v_readlane_b32 s{sL}, v144, 63')
    a('v_sub_u32 v145, v144, v143')
    a('v_add_u32 v146, v145, v140')
    a(f'v_add_u32 v146, {REC // 16}, v146')
    a('v_add_u32 v147, v146, v136')
    a(f'ds_write2_b32 v{vLin}, v146, v147 offset0:1 offset1:3')
    a('v_add_u32 v145, v145, v142')
    for i in range(4):
        a(f'v_mov_b32 v{148 + i}, 0')
    for g in range(13):
        a(f'v_readlane_b32 s{sT}, v145, {4 * g}')
        a(f'v_readlane_b32 s{sT2}, v144, {4 * g}')
        a(f'v_mov_b32 v149, {0x7f000000 | (min(8 * g + 7, NB - 1) << 3):#x}')
        a(f'v_add_u32 v24, s{sT}, v{vLANE}')
        a(f'v_cmpx_gt_u32 vcc, s{sT2}, v24')
        a(f'v_add_u32 v24, {REC // 16}, v24')
        a('v_lshlrev_b32 v24, 4, v24')
        a('ds_write_b128 v24, v[148:151]')
        a('s_mov_b64 exec, -1')
    scatter(a, slots_slow(), 'S')
    a('s_waitcnt lgkmcnt(0)')
    a('s_barrier')
    a('s_branch AFTER_B3')
```

```python
import sys, os
sys.path.insert(0, os.path.dirname(os.path.abspath(__file__)))
from asmlib import Asm, pad, v, s

N = 25000
E = 400000
NB = 98
CH = 1568
NCH = 256
NL2E = 0xBFB8AA3B
NLN2 = 0xBF317218

WS_Q = 0
WS_REC = 0x640000
WS_TAB = 0x980000
WS_WF = 0x9C0000
WF_CST = 3 * 32768
WF_WX = WF_CST + 1024
WF_SIZE = WF_WX + 256
WS_POSF = 0xA00000

OPT = dict(stamps=False)


def srd(a, d, base, off, size):
    if off == 0:
        a(f's_mov_b32 s{d}, s{base}')
        a(f's_mov_b32 s{d + 1}, s{base + 1}')
    else:
        a(f's_add_u32 s{d}, s{base}, {off}')
        a(f's_addc_u32 s{d + 1}, s{base + 1}, 0')
    a(f's_mov_b32 s{d + 2}, {size}')
    a(f's_mov_b32 s{d + 3}, 0x20000')


def scan64(a, r):
    for sh in (1, 2, 4, 8):
        a(f'v_add_u32_dpp v{r}, v{r}, v{r} row_shr:{sh} row_mask:0xf bank_mask:0xf bound_ctrl:1')
    a(f'v_add_u32_dpp v{r}, v{r}, v{r} row_bcast:15 row_mask:0xa bank_mask:0xf')
    a(f'v_add_u32_dpp v{r}, v{r}, v{r} row_bcast:31 row_mask:0xc bank_mask:0xf')


def mfma(a, d, A, B, C=None):
    c = '0' if C is None else v(C, 16)
    a(f'v_mfma_f32_32x32x16_bf16 {v(d, 16)}, {v(A, 4)}, {v(B, 4)}, {c}')


def gen_k1(a):
    HIST = 0
    SORT = 2048
    HL = 0
    WL = 32768
    a('k1_kernel:')
    a('s_cmp_ge_u32 s2, 512')
    a('s_cbranch_scc1 K1_END')
    a('s_load_dwordx16 s[4:19], s[0:1], 0')
    a('s_load_dwordx2 s[24:25], s[0:1], 80')
    a('v_lshrrev_b32 v1, 6, v0')
    a('v_and_b32 v2, 63, v0')
    a('v_readfirstlane_b32 s3, v1')
    a('s_cmp_ge_u32 s2, 256')
    a('s_cbranch_scc1 K1_GEMM')
    a('v_lshlrev_b32 v3, 2, v0')
    a('v_mov_b32 v4, 0')
    a(f'ds_write_b32 v3, v4 offset:{HIST}')
    a(f's_mul_i32 s26, s2, {CH}')
    a(f's_sub_u32 s27, {E}, s26')
    a('s_lshr_b32 s27, s27, 2')
    a(f's_min_u32 s27, s27, {CH // 4}')
    a('v_cmp_gt_u32 s[42:43], s27, v0')
    a('v_lshlrev_b32 v5, 4, v0')
    a('v_lshlrev_b32 v6, 3, v0')
    a('s_lshl_b32 s44, s26, 2')
    a('s_lshl_b32 s45, s26, 1')
    a('s_waitcnt lgkmcnt(0)')
    srd(a, 28, 12, 0, E * 4)
    srd(a, 32, 10, 0, E * 4)
    srd(a, 36, 8, 0, E * 2)
    a('s_mov_b64 exec, s[42:43]')
    a('s_cbranch_execz K1_NOLOAD')
    a('buffer_load_dwordx4 v[8:11], v5, s[28:31], s44 offen')
    a('buffer_load_dwordx4 v[12:15], v5, s[32:35], s44 offen')
    a('buffer_load_dwordx2 v[16:17], v6, s[36:39], s45 offen')
    a('K1_NOLOAD:')
    a('s_mov_b64 exec, -1')
    srd(a, 48, 24, WS_REC, NCH * CH * 8)
    srd(a, 52, 24, WS_TAB, NCH * 1024)
    a('s_cmp_lg_u32 s3, 7')
    a('s_cbranch_scc1 K1_NOPREP')
    a('s_cmp_gt_u32 s2, 97')
    a('s_cbranch_scc1 K1_NOPREP')
    gen_prep(a)
    a('K1_NOPREP:')
    a('s_barrier')
    a('s_mov_b64 exec, s[42:43]')
    a('s_cbranch_execz K1_NOHIST')
    a('s_movk_i32 s46, 10700')
    a(f's_movk_i32 s47, {-NB}')
    a('v_mov_b32 v7, 1')
    a('s_waitcnt vmcnt(2)')
    for i in range(4):
        a(f'v_mul_u32_u24 v{20 + i}, s46, v{8 + i}')
        a(f'v_lshrrev_b32 v{20 + i}, 20, v{20 + i}')
        a(f'v_lshlrev_b32 v{24 + i}, 3, v{20 + i}')
        a(f'ds_add_rtn_u32 v{28 + i}, v{24 + i}, v7 offset:{HIST}')
    for i in range(4):
        a(f'v_mad_i32_i24 v{8 + i}, v{20 + i}, s47, v{8 + i}')
        a(f'v_lshlrev_b32 v{8 + i}, 3, v{8 + i}')
    a('s_waitcnt vmcnt(0)')
    for i in range(4):
        a(f'v_lshl_or_b32 v{33 + 2 * i}, v{12 + i}, 16, v{8 + i}')
        if i % 2 == 0:
            a(f'v_lshlrev_b32 v{32 + 2 * i}, 16, v{16 + i // 2}')
        else:
            a(f'v_and_b32 v{32 + 2 * i}, 0xffff0000, v{16 + i // 2}')
    a('K1_NOHIST:')
    a('s_mov_b64 exec, -1')
    a('s_waitcnt lgkmcnt(0)')
    a('s_barrier')
    a('v_lshlrev_b32 v3, 5, v2')
    a(f'ds_read_b128 v[40:43], v3 offset:{HIST}')
    a(f'ds_read_b128 v[44:47], v3 offset:{HIST + 16}')
    a('s_waitcnt lgkmcnt(0)')
    a('v_add_u32 v41, v40, v42')
    a('v_add_u32 v43, v41, v44')
    a('v_add_u32 v45, v43, v46')
    a('v_mov_b32 v47, v45')
    scan64(a, 47)
    a('v_sub_u32 v48, v47, v45')
    a('v_add_u32 v49, v48, v40')
    a('v_add_u32 v50, v48, v41')
    a('v_add_u32 v51, v48, v43')
    a(f'v_add_u32 v3, {HIST}, v3')
    a('ds_write2_b32 v3, v48, v49 offset0:1 offset1:3')
    a('ds_write2_b32 v3, v50, v51 offset0:5 offset1:7')
    a('s_cmp_lg_u32 s3, 7')
    a('s_cbranch_scc1 K1_NOTAB')
    a('v_lshl_or_b32 v52, v40, 16, v48')
    a('v_lshl_or_b32 v53, v42, 16, v49')
    a('v_lshl_or_b32 v54, v44, 16, v50')
    a('v_lshl_or_b32 v55, v46, 16, v51')
    a('v_lshlrev_b32 v3, 4, v2')
    a('s_lshl_b32 s44, s2, 10')
    a('buffer_store_dwordx4 v[52:55], v3, s[52:55], s44 offen')
    a('K1_NOTAB:')
    a('s_mov_b64 exec, s[42:43]')
    a('s_cbranch_execz K1_NOSCAT')
    for i in range(4):
        a(f'ds_read_b32 v{20 + i}, v{24 + i} offset:{HIST + 4}')
    for i in range(4):
        a(f's_waitcnt lgkmcnt({3 - i + i})')
        a(f'v_add_lshl_u32 v{20 + i}, v{20 + i}, v{28 + i}, 3')
        a(f'ds_write_b64 v{20 + i}, v[{32 + 2 * i}:{33 + 2 * i}] offset:{SORT}')
    a('K1_NOSCAT:')
    a('s_mov_b64 exec, -1')
    a('s_waitcnt lgkmcnt(0)')
    a('s_barrier')
    a('v_lshlrev_b32 v5, 4, v0')
    a(f'ds_read_b128 v[8:11], v5 offset:{SORT}')
    a(f'ds_read_b128 v[12:15], v5 offset:{SORT + 8192}')
    a(f's_mul_i32 s44, s2, {CH * 8}')
    a('s_add_u32 s45, s44, 8192')
    a(f'v_cmp_gt_u32 vcc, {CH * 8 // 16 - 512}, v0')
    a('s_waitcnt lgkmcnt(1)')
    a('buffer_store_dwordx4 v[8:11], v5, s[48:51], s44 offen')
    a('s_and_saveexec_b64 s[40:41], vcc')
    a('s_cbranch_execz K1_END')
    a('s_waitcnt lgkmcnt(0)')
    a('buffer_store_dwordx4 v[12:15], v5, s[48:51], s45 offen')
    a('s_endpgm')
    a('K1_GEMM:')
    a('s_sub_u32 s26, s2, 256')
    a(f's_mul_i32 s26, s26, {NB}')
    a(f's_sub_u32 s27, {N}, s26')
    a(f's_min_u32 s27, s27, {NB}')
    a('s_lshl_b32 s44, s26, 8')
    a('s_lshl_b32 s45, s27, 8')
    a('v_lshrrev_b32 v4, 4, v2')
    a('s_and_b32 s46, s3, 3')
    a('s_lshl_b32 s46, s46, 2')
    a('v_add_u32 v5, s46, v4')
    a('v_and_b32 v6, 15, v2')
    a('v_xor_b32 v5, v5, v6')
    a('v_lshlrev_b32 v5, 4, v5')
    a('v_lshl_or_b32 v3, v4, 8, v5')
    a('v_bfe_u32 v5, v2, 2, 2')
    a('v_xor_b32 v5, v5, v4')
    a('v_lshlrev_b32 v5, 6, v5')
    a('v_and_b32 v6, 3, v2')
    a('v_lshl_or_b32 v5, v6, 4, v5')
    a('v_lshl_or_b32 v7, v4, 8, v5')
    a('s_waitcnt lgkmcnt(0)')
    srd(a, 28, 4, 's44', 's45')
    srd(a, 32, 14, 128 * 256, 32768)
    srd(a, 36, 24, 's44', 's45')
    a('s_lshl_b32 s47, s3, 10')
    for m in range(3):
        a(f's_add_u32 m0, s47, {HL + m * 8192}')
        a(f's_add_u32 s48, s47, {m * 8192}')
        a('buffer_load_dwordx4 v3, s[28:31], s48 offen lds')
    a('s_cmp_lg_u32 s3, 0')
    a('s_cbranch_scc1 K1_G1')
    a(f's_mov_b32 m0, {HL + 24576}')
    a('s_movk_i32 s48, 24576')
    a('buffer_load_dwordx4 v3, s[28:31], s48 offen lds')
    a('K1_G1:')
    a('s_lshl_b32 s47, s3, 12')
    for m in range(4):
        a(f's_add_u32 m0, s47, {WL + m * 1024}')
        a(f's_add_u32 s48, s47, {m * 1024}')
        a('buffer_load_dwordx4 v7, s[32:35], s48 offen lds')
    srd(a, 40, 6, 0, N * 6)
    a('s_lshl_b32 s48, s26, 4')
    a(f's_add_u32 s48, s48, {WS_POSF}')
    a('s_lshl_b32 s49, s27, 4')
    srd(a, 52, 24, 's48', 's49')
    a('s_cmp_gt_u32 s3, 1')
    a('s_cbranch_scc1 K1_G2')
    a('v_add_u32 v8, s26, v0')
    a('v_mul_u32_u24 v8, 6, v8')
    a('v_and_b32 v9, -4, v8')
    a('buffer_load_dwordx2 v[10:11], v9, s[40:43], 0 offen')
    a('v_lshlrev_b32 v8, 3, v8')
    a('v_lshlrev_b32 v9, 4, v0')
    a('v_mov_b32 v15, 0')
    a('s_waitcnt vmcnt(0)')
    a('v_alignbit_b32 v13, v11, v10, v8')
    a('v_lshrrev_b32 v14, v8, v11')
    a('v_lshlrev_b32 v12, 16, v13')
    a('v_and_b32 v13, 0xffff0000, v13')
    a('v_lshlrev_b32 v14, 16, v14')
    a('buffer_store_dwordx4 v[12:15], v9, s[52:55], 0 offen')
    a('K1_G2:')
    a('s_lshr_b32 s46, s3, 1')
    a('s_and_b32 s47, s3, 1')
    a('v_and_b32 v4, 31, v2')
    a('v_lshrrev_b32 v5, 5, v2')
    a('v_and_b32 v6, 15, v2')
    a('v_xor_b32 v6, v6, v5')
    a('v_lshlrev_b32 v6, 4, v6')
    a('v_lshl_or_b32 v6, v4, 8, v6')
    a('s_lshl_b32 s48, s46, 13')
    a(f's_add_u32 s48, s48, {HL}')
    a('v_add_u32 v16, s48, v6')
    for k in range(1, 8):
        a(f'v_xor_b32 v{16 + k}, {k << 5}, v16')
    a('v_bfe_u32 v6, v2, 2, 2')
    a('v_lshl_add_u32 v8, v5, 3, v6')
    a('v_lshlrev_b32 v8, 8, v8')
    a('v_bfe_u32 v9, v2, 4, 1')
    a('v_lshl_or_b32 v8, v9, 5, v8')
    a('v_and_b32 v9, 3, v2')
    a('v_lshl_or_b32 v8, v9, 3, v8')
    a(f'v_add_u32 v8, {WL}, v8')
    a('s_lshl_b32 s48, s47, 1')
    a('v_xor_b32 v9, s48, v6')
    a('v_lshl_or_b32 v24, v9, 6, v8')
    a('v_xor_b32 v25, 64, v24')
    a('s_lshl_b32 s48, s46, 13')
    a('s_lshl_b32 s49, s47, 7')
    a('s_add_u32 s48, s48, s49')
    a('v_lshlrev_b32 v9, 10, v5')
    a('v_lshl_or_b32 v9, v4, 2, v9')
    a('v_add_u32 v26, s48, v9')
    a('s_waitcnt vmcnt(0)')
    a('s_barrier')
    A0, B0, AC = 32, 64, 96
    for k in range(8):
        a(f'ds_read_b128 {v(A0 + 4 * k, 4)}, v{16 + k}')
        a(f'ds_read_b64_tr_b16 {v(B0 + 4 * k, 2)}, v24 offset:{k * 4096}')
        a(f'ds_read_b64_tr_b16 {v(B0 + 4 * k + 2, 2)}, v24 offset:{k * 4096 + 1024}')
        if k >= 4:
            kk = k - 4
            a('s_waitcnt lgkmcnt(12)')
            mfma(a, AC, A0 + 4 * kk, B0 + 4 * kk, None if kk == 0 else AC)
    for kk in range(4):
        a(f'ds_read_b64_tr_b16 {v(B0 + 4 * kk, 2)}, v25 offset:{kk * 4096}')
        a(f'ds_read_b64_tr_b16 {v(B0 + 4 * kk + 2, 2)}, v25 offset:{kk * 4096 + 1024}')
        a(f's_waitcnt lgkmcnt({3 * (3 - kk) + 2 * (kk + 1)})')
        mfma(a, AC, A0 + 4 * (kk + 4), B0 + 4 * (kk + 4), AC)
    for kk in range(4):
        a(f'ds_read_b64_tr_b16 {v(B0 + 4 * (kk + 4), 2)}, v25 offset:{(kk + 4) * 4096}')
        a(f'ds_read_b64_tr_b16 {v(B0 + 4 * (kk + 4) + 2, 2)}, v25 offset:{(kk + 4) * 4096 + 1024}')
        a('s_waitcnt lgkmcnt(8)')
        mfma(a, AC + 16, A0 + 4 * kk, B0 + 4 * kk, None if kk == 0 else AC + 16)
    for kk in range(4, 8):
        a(f's_waitcnt lgkmcnt({2 * (7 - kk)})')
        mfma(a, AC + 16, A0 + 4 * kk, B0 + 4 * kk, AC + 16)
    a(f's_mov_b32 s48, {NL2E:#x}')
    for i in range(16):
        a(f'v_mul_f32 v{AC + i}, s48, v{AC + i}')
    a('s_movk_i32 s49, 2048')
    a('s_movk_i32 s50, 4096')
    a('s_movk_i32 s51, 6144')
    for i in range(16):
        a(f'v_mul_f32 v{AC + 16 + i}, s48, v{AC + 16 + i}')
        a(f'v_cvt_pk_bf16_f32 v{32 + i}, v{AC + i}, v{AC + 16 + i}')
        so = ['0', 's49', 's50', 's51'][i // 4]
        a(f'buffer_store_dword v{32 + i}, v26, s[36:39], {so} offen offset:{(i % 4) * 256}')
    a('K1_END:')
    a('s_endpgm')


def gen_prep(a):
    srd(a, 56, 24, WS_WF, WF_SIZE)
    a('v_and_b32 v60, 31, v2')
    a('v_lshrrev_b32 v61, 5, v2')
    a('s_cmp_eq_u32 s2, 96')
    a('s_cbranch_scc1 K1_PCST')
    a('s_cmp_eq_u32 s2, 97')
    a('s_cbranch_scc1 K1_PWX')
    a('s_lshr_b32 s60, s2, 5')
    a('s_bfe_u32 s61, s2, 0x10004')
    a('s_bfe_u32 s62, s2, 0x10003')
    a('s_and_b32 s63, s2, 7')
    a('s_cmp_eq_u32 s60, 0')
    a('s_cselect_b32 s64, s14, s18')
    a('s_cselect_b32 s65, s15, s19')
    a('s_mov_b32 s66, 65536')
    a('s_mov_b32 s67, 0x20000')
    a('s_cselect_b32 s68, 0, 1')
    a('s_cselect_b32 s69, 5, 0')
    a('s_lshl_b32 s69, s62, s69')
    a('s_lshl_b32 s70, s61, 6')
    a('s_add_u32 s69, s69, s70')
    a('v_lshlrev_b32 v62, s68, v60')
    a('v_add_u32 v62, s69, v62')
    a('v_lshlrev_b32 v62, 1, v62')
    a('s_lshl_b32 s70, s63, 4')
    a('s_lshr_b32 s71, s63, 2')
    a('s_lshl_b32 s71, s71, 6')
    a('s_and_b32 s72, s63, 3')
    a('s_lshl_b32 s72, s72, 3')
    a('s_add_u32 s71, s71, s72')
    a('s_add_u32 s71, s71, 128')
    a('s_cmp_eq_u32 s60, 2')
    a('s_cselect_b32 s70, s71, s70')
    a('s_cselect_b32 s71, 9, 11')
    a('v_lshlrev_b32 v63, s71, v61')
    a('s_lshl_b32 s70, s70, 8')
    a('v_add3_u32 v62, v62, v63, s70')
    a('s_cmp_eq_u32 s60, 2')
    for t in range(8):
        tau = 32 * (t & 1) + 4 * (t >> 2) + ((t >> 1) & 1)
        a(f's_mov_b32 s72, {t * 256}')
        a(f's_cselect_b32 s72, {tau * 256}, s72')
        a(f'buffer_load_ushort v{64 + t}, v62, s[64:67], s72 offen')
    a('s_lshl_b32 s70, s2, 10')
    a('v_lshlrev_b32 v62, 4, v2')
    a('s_waitcnt vmcnt(0)')
    for t in range(4):
        a(f'v_lshl_or_b32 v{72 + t}, v{65 + 2 * t}, 16, v{64 + 2 * t}')
    a('buffer_store_dwordx4 v[72:75], v62, s[56:59], s70 offen')
    a('s_branch K1_NOPREP')
    a('K1_PCST:')
    srd(a, 64, 14, 256 * 256, 512)
    a('v_and_b32 v62, 1, v60')
    a('v_lshlrev_b32 v62, 5, v62')
    a('v_lshrrev_b32 v63, 1, v60')
    a('v_add_lshl_u32 v62, v62, v63, 1')
    for b in range(4):
        f0 = 64 * (b >> 1) + 16 * (b & 1)
        a(f'buffer_load_ushort v{64 + 2 * b}, v62, s[64:67], 0 offen offset:{f0 * 2}')
        a(f'buffer_load_ushort v{65 + 2 * b}, v62, s[64:67], 0 offen offset:{256 + f0 * 2}')
    a(f's_mov_b32 s70, {NL2E:#x}')
    a('v_cmp_eq_u32 vcc, 0, v61')
    a('s_waitcnt vmcnt(0)')
    for b in range(4):
        x, y = 64 + 2 * b, 65 + 2 * b
        a(f'v_lshlrev_b32 v{x}, 16, v{x}')
        a(f'v_lshlrev_b32 v{y}, 16, v{y}')
        a(f'v_mul_f32 v76, s70, v{x}')
        a(f'v_mul_f32 v77, s70, v{y}')
        a('v_cvt_pk_bf16_f32 v78, v76, v77')
        a('v_lshlrev_b32 v79, 16, v78')
        a('v_and_b32 v80, 0xffff0000, v78')
        a(f'v_fma_f32 v76, s70, v{x}, -v79')
        a(f'v_fma_f32 v77, s70, v{y}, -v80')
        a('v_cvt_pk_bf16_f32 v79, v76, v77')
        a(f'v_cndmask_b32 v{72 + b}, v79, v78, vcc')
    a('v_lshlrev_b32 v62, 4, v2')
    a(f's_mov_b32 s70, {WF_CST}')
    a('buffer_store_dwordx4 v[72:75], v62, s[56:59], s70 offen')
    a('s_branch K1_NOPREP')
    a('K1_PWX:')
    srd(a, 64, 16, 0, 256)
    a('v_bfe_u32 v62, v2, 3, 1')
    a('v_lshlrev_b32 v62, 6, v62')
    a('v_bfe_u32 v63, v2, 1, 2')
    a('v_lshl_or_b32 v62, v63, 3, v62')
    a('v_and_b32 v63, 1, v2')
    a('v_lshl_or_b32 v62, v63, 1, v62')
    a('v_lshlrev_b32 v62, 1, v62')
    for t in range(8):
        tau = 32 * (t & 1) + 4 * (t >> 2) + ((t >> 1) & 1)
        a(f'buffer_load_ushort v{64 + t}, v62, s[64:67], 0 offen offset:{tau * 2}')
    a('v_lshlrev_b32 v62, 4, v2')
    a(f's_mov_b32 s70, {WF_WX}')
    a('s_waitcnt vmcnt(0)')
    for t in range(4):
        a(f'v_lshl_or_b32 v{72 + t}, v{65 + 2 * t}, 16, v{64 + 2 * t}')
    a('buffer_store_dwordx4 v[72:75], v62, s[56:59], s70 offen')


def kd(name, vgpr, sgpr):
    return f'''.section .rodata,"a"
.p2align 6
.amdhsa_kernel {name}
  .amdhsa_next_free_vgpr {vgpr}
  .amdhsa_next_free_sgpr {sgpr}
  .amdhsa_accum_offset {(vgpr + 3) // 4 * 4}
  .amdhsa_group_segment_fixed_size 0
  .amdhsa_kernarg_size 88
  .amdhsa_user_sgpr_count 2
  .amdhsa_user_sgpr_kernarg_segment_ptr 1
  .amdhsa_system_sgpr_workgroup_id_x 1
  .amdhsa_float_denorm_mode_32 3
.end_amdhsa_kernel
'''


HEADER = '''; EGNN layer: k1 bins the edges by destination tile and computes Q = h @ w_e[128:256];
'''


def build(only_k1=False, verbose=False):
    from gen_k2 import gen_k2, K2_LDS
    out = HEADER
    out += '; @launch kernel=k1_kernel grid=(512,1,1) block=(512,1,1) lds=65536\n'
    if not only_k1:
        out += f'; @launch kernel=k2_kernel grid=(256,1,1) block=(512,1,1) lds={K2_LDS}\n'
    out += '.amdgcn_target "amdgcn-amd-amdhsa--gfx950"\n.text\n'
    a = Asm()
    gen_k1(a)
    out += '.globl k1_kernel\n.p2align 8\n.type k1_kernel,@function\n' + '\n'.join(pad(a.lines, verbose)) + '\n'
    if not only_k1:
        a = Asm()
        gen_k2(a)
        out += '.globl k2_kernel\n.p2align 8\n.type k2_kernel,@function\n' + '\n'.join(pad(a.lines, verbose)) + '\n'
    out += kd('k1_kernel', 128, 80)
    if not only_k1:
        out += kd('k2_kernel', 256, 96)
    return out


if __name__ == '__main__':
    path = sys.argv[1] if len(sys.argv) > 1 else 'gather_scatter__cheap_equivariant_egnn__graph.s'
    for x in sys.argv[2:]:
        if '=' in x:
            k, val = x.split('=')
            OPT[k] = int(val)
    txt = build(only_k1='k1' in sys.argv[2:], verbose='-v' in sys.argv)
    open(path, 'w').write(txt)
    print('wrote', path, len(txt), 'bytes')
```

```python
import sys,re
def mk(src,dst,mode,mult=1):
    t=open(src).read()
    def pre(name,off,lab):
        return f'''{name}:
    s_cmp_lg_u32 s2, 0
    s_cbranch_scc1 {lab}
    s_load_dwordx2 s[8:9], s[0:1], 80
    s_memrealtime s[6:7]
    s_waitcnt lgkmcnt(0)
    v_mov_b32 v2, s6
    v_mov_b32 v1, {off}
    global_store_dword v1, v2, s[8:9]
{lab}:
'''
    t=t.replace('k1_kernel:\n',pre('k1_kernel',0x3000000,'KX1'),1)
    if 'k2_kernel:\n' in t: t=t.replace('k2_kernel:\n',pre('k2_kernel',0x3000100,'KX2'),1)
    k3=f'''.globl k3_kernel
.p2align 8
.type k3_kernel,@function
k3_kernel:
    s_cmp_lg_u32 s2, 0
    s_cbranch_scc1 K3E
    s_load_dwordx2 s[8:9], s[0:1], 80
    s_memrealtime s[6:7]
    s_waitcnt lgkmcnt(0)
    v_mov_b32 v1, 0x3000000
    global_load_dword v2, v1, s[8:9]
    global_load_dword v3, v1, s[8:9] offset:256
    s_waitcnt vmcnt(0)
    v_readfirstlane_b32 s10, v2
    v_readfirstlane_b32 s11, v3
    s_nop 4
    {dict(all='s_sub_u32 s12, s6, s10',k1='s_sub_u32 s12, s11, s10',k2='s_sub_u32 s12, s6, s11',zero='s_mov_b32 s12, 0')[mode]}
    s_mul_i32 s12, s12, {mult}
    s_min_u32 s12, s12, 20000
    s_mov_b32 s16, 200000
K3L:
    s_memrealtime s[14:15]
    s_waitcnt lgkmcnt(0)
    s_sub_u32 s14, s14, s6
    s_sub_u32 s16, s16, 1
    s_cbranch_scc1 K3E
    s_cmp_lt_u32 s14, s12
    s_cbranch_scc1 K3L
K3E:
    s_endpgm
'''
    kd='''.section .rodata,"a"
.p2align 6
.amdhsa_kernel k3_kernel
  .amdhsa_next_free_vgpr 8
  .amdhsa_next_free_sgpr 24
  .amdhsa_accum_offset 8
  .amdhsa_group_segment_fixed_size 0
  .amdhsa_kernarg_size 88
  .amdhsa_user_sgpr_count 2
  .amdhsa_user_sgpr_kernarg_segment_ptr 1
  .amdhsa_system_sgpr_workgroup_id_x 1
.end_amdhsa_kernel
'''
    t=t.replace('.amdgcn_target','; @launch kernel=k3_kernel grid=(1,1,1) block=(64,1,1) lds=0\n.amdgcn_target',1)
    t=t.replace('.globl k1_kernel',k3+'.globl k1_kernel',1)+kd
    open(dst,'w').write(t)
if __name__=='__main__':
    src=sys.argv[1]
    for m in ('zero','all','k1','k2'): mk(src,f'exp/sp_{m}.s',m)
```

```python
from asmlib import v, s
import gen as G
from gen import N, E, NB, CH, NCH, NL2E, NLN2, WS_REC, WS_TAB, WS_WF, WF_CST, WF_WX, WF_SIZE, WS_POSF, srd, scan64, mfma
import sys
OPT = sys.modules['__main__'].OPT if hasattr(sys.modules['__main__'], 'OPT') else G.OPT

S_ = 0
RING = 16384
PT = 81920
MI = 107008
MIS = 272
REC = 133664
CAP = 1760
FLAGS = 161824
LUT = 161856
WXT = 161984
PTILE = 162240
LONGF = 163808
K2_LDS = 163840
HIST = 0
SEGL, SEGC, SEGS = 2048, 4096, 6144
assert PT + NB * 256 == MI and MI + NB * MIS == REC and REC + CAP * 16 == FLAGS

vTID, vLANE = 0, 1
vAQ0, vAQ1, vDMAc, vRecA, vDA0, vDA1, vX2A, vLUTc, vSc, vSA = 2, 3, 4, 5, 6, 7, 8, 9, 10, 11
vStrE, vStrO, vBPslot, vBPc, vOldc, vFslot, vFc, vFp, vTab, vRem, vWx, vT = 12, 13, 14, 15, 16, 17, 18, 19, 20, 21, 22, 23
SEG = 24
Z0 = 32
ACC = 64
D = (128, 144)
EE = 160
M = 176
AQ = 184
BP = 192
I0, I1 = 208, 212
AP = 216
OLD = 222
SEL = 230
vO, vLin = 234, 235
T0, T1, T2, T3 = 236, 237, 238, 239
WXH = 240

sW = 3
sNV, sBin, sN0 = 22, 26, 27
sQ, sREC, sWF, sH, sPOSF, sOUT, sOUTP, sTT = 28, 32, 36, 40, 44, 48, 52, 56
sL, sNU, sU0, sRing = 60, 61, 62, 63
sNF, sNL = 64, 66
sNB, sNFW, sNLW, sNBn, sNew, sNFn, sFlagV, sSlow, sBatch = 68, 69, 70, 71, 72, 73, 74, 75, 76
s256, s272, sT = 77, 78, 79
sMa, sMb, sMM, sMP = 80, 82, 84, 86
sT2 = 23
sLtot = 2

_stamp = [0]


def ustamp(a):
    if OPT.get('stamps') != 2:
        return
    a('s_memtime s[100:101]')
    for i in range(11):
        a(f's_mov_b32 s{88 + i}, s{89 + i}')
    a('s_waitcnt lgkmcnt(0)')
    a('s_mov_b32 s99, s100')


def stamp(a):
    if OPT.get('stamps') != 1:
        return
    i = _stamp[0]
    _stamp[0] += 1
    assert i < 12
    a('s_memtime s[100:101]')
    a('s_waitcnt lgkmcnt(0)')
    a(f's_mov_b32 s{88 + i}, s100')


def slots_fast():
    out = []
    rk = list(range(56, 64)) + list(range(240, 244))
    for q in range(12):
        k, h = divmod(q, 2)
        out.append(dict(R=32 + 4 * k + 2 * h, rank=rk[q], ad=244 + q, thr=4 * k + h))
    return out


def slots_slow():
    return [dict(R=128 + 2 * h, rank=132 + h, ad=134 + h, thr=h) for h in range(2)]


def hist(a, slots, tag):
    a(f'v_mov_b32 v{vT}, 1')
    for q in slots:
        a(f'v_cmpx_lt_i32 vcc, {q["thr"]}, v{vRem}')
        a(f's_cbranch_execz H_{tag}')
        a(f'v_and_b32 v{q["ad"]}, 0x3f8, v{q["R"] + 1}')
        a(f'ds_add_rtn_u32 v{q["rank"]}, v{q["ad"]}, v{vT} offset:{HIST}')
    a(f'H_{tag}:')
    a('s_mov_b64 exec, -1')


def scatter(a, slots, tag):
    for q in slots:
        a(f'v_cmpx_lt_i32 vcc, {q["thr"]}, v{vRem}')
        a(f's_cbranch_execz SC1_{tag}')
        a(f'ds_read_b32 v{q["ad"]}, v{q["ad"]} offset:{HIST + 4}')
    a(f'SC1_{tag}:')
    a('s_mov_b64 exec, -1')
    a('s_waitcnt lgkmcnt(0)')
    for q in slots:
        a(f'v_cmpx_lt_i32 vcc, {q["thr"]}, v{vRem}')
        a(f's_cbranch_execz SC2_{tag}')
        a(f'v_add_lshl_u32 v{q["ad"]}, v{q["ad"]}, v{q["rank"]}, 4')
        a(f'ds_write_b64 v{q["ad"]}, {v(q["R"], 2)}')
    a(f'SC2_{tag}:')
    a('s_mov_b64 exec, -1')


def z0_gemm(a, extra=None):
    extra = extra or []
    per = -(-len(extra) // 16)
    n = 0
    for k in range(8):
        for j in range(2):
            mfma(a, Z0 + 16 * j, 160 + 4 * k, 64 + (j * 8 + k) * 4, None if k == 0 else Z0 + 16 * j)
            for x in extra[n * per:(n + 1) * per]:
                a(x)
            n += 1


def z0_scale(a):
    a(f's_mov_b32 s{sT}, {NL2E:#x}')
    for i in range(32):
        a(f'v_mul_f32 v{Z0 + i}, s{sT}, v{Z0 + i}')


def end_loads(a):
    a('s_waitcnt vmcnt(0) lgkmcnt(0)')
    a(f's_lshl_b32 s{sT}, s{sW}, 12')
    a(f's_add_u32 s{sT}, s{sT}, 65536')
    for m in range(4):
        a(f's_add_u32 m0, s{sRing}, {m * 1024}')
        a(f's_add_u32 s{sT2}, s{sT}, {m * 1024}')
        a(f'buffer_load_dwordx4 v{vLin}, {s(sWF, 4)}, s{sT2} offen lds')
    for i in range(16):
        if i % 4 == 0:
            a(f's_movk_i32 s{sT}, {(i // 4) * 2048}')
        a(f'buffer_load_dword v{D[1] + i}, v{vO}, {s(sH, 4)}, s{sT} offen offset:{(i % 4) * 256}')


def set_flag(a):
    a(f's_lshl_b32 s{sT}, s{sW}, 2')
    a(f's_add_u32 s{sT}, s{sT}, {FLAGS}')
    a('s_mov_b64 exec, 1')
    a(f'v_mov_b32 v{T0}, s{sT}')
    a(f'v_mov_b32 v{T1}, s{sFlagV}')
    a(f'ds_write_b32 v{T0}, v{T1}')
    a('s_mov_b64 exec, -1')


def bp_load(a, sreg):
    a(f'v_subrev_u32 v{T0}, s{sreg}, v{vBPslot}')
    a(f'v_and_b32 v{T0}, 7, v{T0}')
    a(f'v_add_u32 v{T0}, s{sreg}, v{T0}')
    a(f'v_lshl_add_u32 v{T0}, v{T0}, 8, v{vBPc}')
    for b in range(4):
        a(f'ds_read_b64_tr_b16 {v(BP + 4 * b, 2)}, v{T0} offset:{64 * b}')


def dma_pair(bb):
    return [f's_add_u32 m0, s{sRing}, {bb * 2048 - 64 * bb}',
            f'buffer_load_dwordx4 v{vDA0}, {s(sQ, 4)}, 0 offen offset:{64 * bb} lds',
            f's_add_u32 m0, s{sRing}, {bb * 2048 + 1024 - 64 * bb}',
            f'buffer_load_dwordx4 v{vDA1}, {s(sQ, 4)}, 0 offen offset:{64 * bb} lds']


def mf(d, A, B, C=None):
    c = '0' if C is None else v(C, 16)
    return f'v_mfma_f32_32x32x16_bf16 {v(d, 16)}, {v(A, 4)}, {v(B, 4)}, {c}'


def s_stage(b, first):
    acc = ACC + 16 * b
    return [mf(acc, M, SEG, None if first else acc), mf(acc, M + 4, SEG + 4, acc)]


def s_build():
    return [f'ds_write_b64 v{vSA}, {v(AP + 4, 2)}',
            f'ds_read_b64_tr_b16 {v(SEG, 2)}, v{vStrE}',
            f'ds_read_b64_tr_b16 {v(SEG + 2, 2)}, v{vStrO} offset:512',
            f'ds_read_b64_tr_b16 {v(SEG + 4, 2)}, v{vStrE} offset:1024',
            f'ds_read_b64_tr_b16 {v(SEG + 6, 2)}, v{vStrO} offset:1536',
            f'ds_write_b64 v{vSA}, {v(SEL + 2, 2)}']


def step(a, b, first, has_s, tag):
    Dc, Dn = D[b & 1], D[(b + 1) & 1]
    bn = (b + 1) % 4
    a.c(f'---- step {b} {tag}')
    a('s_waitcnt lgkmcnt(0)')
    if b == 3:
        a(f'v_mad_u32_u16 v{vDA0}, v{vDA0}, s{s256}, v{vDMAc} op_sel:[1,0,0,0]')
        a(f'v_mad_u32_u16 v{vDA1}, v{vDA1}, s{s256}, v{vDMAc} op_sel:[1,0,0,0]')
        a(f's_cmp_ge_u32 s{sNU}, 3')
        a(f's_cselect_b32 s{sQ + 2}, {N * 256}, 0')
    ex = [[] for _ in range(16)]
    d = dma_pair(bn)
    ex[0].append(mf(Dn, AP, BP + 4 * bn))
    ex[1].append(d[0])
    ex[2].append(d[1])
    ex[3].append(d[2])
    ex[4].append(mf(Dn, AQ, I0, Dn))
    ex[5].append(d[3])
    ex[8].append(mf(Dn, AQ + 4, I1, Dn))
    if b == 2:
        ex[6].append(f'ds_read_b128 {v(AP + 2, 4)}, v{vRecA}')
        ex[7].append(f'ds_read2_b32 {v(vDA0, 2)}, v{vX2A} offset0:0 offset1:64')
        ex[9] += [f's_bfe_u32 s{sNFn}, s{sNF}, 0x80008',
                  f's_bfe_u32 s{sT}, s{sNL}, 0x80008']
        ex[10] += [f's_sub_u32 s{sT}, s{sT}, s{sNB}',
                   f's_min_u32 s{sNBn}, s{sNFn}, {NB - 8}']
        ex[11] += [f's_cmp_ge_u32 s{sT}, 8',
                   f's_cselect_b32 s{sNew}, 1, 0']
        ex[12] += [f's_cmp_ge_u32 s{sNU}, 2',
                   f's_cselect_b32 s{sNew}, s{sNew}, 0']
    if b == 0 and has_s:
        ex[9] += [f's_and_b32 s{sNLW}, s{sNL}, 0xff',
                  f's_lshr_b64 {s(sNF, 2)}, {s(sNF, 2)}, 8']
        ex[10] += [f's_lshr_b64 {s(sNL, 2)}, {s(sNL, 2)}, 8',
                   f's_sub_u32 s{sNU}, s{sNU}, 1']
    for i in range(16):
        for x in ex[i]:
            a(x)
        a(f'v_exp_f32 v{EE + i}, v{Dc + i}')
    for i in range(8):
        a(f'v_pk_add_f32 {v(EE + 2 * i, 2)}, {v(EE + 2 * i, 2)}, 1.0 op_sel_hi:[1,0]')
    rx = [[] for _ in range(17)]
    if has_s:
        ss = s_stage((b - 1) % 4, first)
        rx[0].append(ss[0])
        rx[4].append(ss[1])
    if b == 2:
        rx[1] += ['s_waitcnt lgkmcnt(1)',
                  f'v_and_or_b32 v{vT}, v{AP + 3}, 56, v{vLUTc}',
                  f'v_bitop3_b32 v{vSA}, v{AP + 3}, 56, v{vSc} bitop3:0x6a']
        rx[2] += [f'ds_read_b64 {v(AP, 2)}, v{vT}',
                  f'v_add_u32 v{vRecA}, 0x200, v{vRecA}',
                  f'v_add_u32 v{vX2A}, 0x200, v{vX2A}']
    b2 = (b + 2) % 4
    rx[5] += ['s_waitcnt vmcnt(6)', f'ds_read_b128 {v(AQ, 4)}, v{vAQ0} offset:{b2 * 2048}']
    rx[6] += [f'ds_read_b128 {v(AQ + 4, 4)}, v{vAQ1} offset:{b2 * 2048}']
    if b == 0:
        for i, x in enumerate(s_build()):
            rx[8 + i].append(x)
    for i in range(16):
        for x in rx[i]:
            a(x)
        if b == 2 and i == 8:
            a(f's_cmp_eq_u32 s{sNew}, 0')
            a(f's_cbranch_scc1 NOBP_{tag}')
            bp_load(a, sNBn)
            a(f'NOBP_{tag}:')
        a(f'v_rcp_f32 v{EE + i}, v{EE + i}')
    for i in range(8):
        a(f'v_pk_mul_f32 {v(EE + 2 * i, 2)}, {v(EE + 2 * i, 2)}, {v(Dc + 2 * i, 2)}')
    for i in range(8):
        a(f'v_cvt_pk_bf16_f32 v{M + i}, v{EE + 2 * i}, v{EE + 2 * i + 1}')


def flush(a):
    a.c('---- flush window')
    a('s_waitcnt lgkmcnt(0)')
    a(f'v_subrev_u32 v{T0}, s{sNB}, v{vBPslot}')
    a(f'v_subrev_u32 v{T1}, s{sNB}, v{vFslot}')
    a(f'v_and_b32 v{T0}, 7, v{T0}')
    a(f'v_and_b32 v{T1}, 7, v{T1}')
    a(f'v_add_u32 v{T0}, s{sNB}, v{T0}')
    a(f'v_add_u32 v{T1}, s{sNB}, v{T1}')
    a(f'v_mad_u32_u24 v{T0}, v{T0}, s{s272}, v{vOldc}')
    for b in range(4):
        a(f'ds_read_b64_tr_b16 {v(OLD + 2 * b, 2)}, v{T0} offset:{64 * b}')
    for k in range(4):
        a(f'ds_read_b128 {v(EE + 4 * k, 4)}, v{vWx} offset:{32 * k}')
    a(f'v_mad_u32_u24 v{T3}, v{T1}, s{s272}, v{vFp}')
    a(f'v_subrev_u32 v{T2}, s{sNFW}, v{T1}')
    a(f'ds_read_b32 v{vT}, v{T3}')
    a(f's_sub_u32 s{sT}, s{sNLW}, s{sNFW}')
    a(f'v_cmp_ge_u32 vcc, s{sT}, v{T2}')
    a(f'v_mad_u32_u24 v{T1}, v{T1}, s{s272}, v{vFc}')
    a(f's_and_b64 {s(sMa, 2)}, vcc, {s(sMM, 2)}')
    a(f's_and_b64 {s(sMb, 2)}, vcc, {s(sMP, 2)}')
    a('s_waitcnt lgkmcnt(5)')
    for b in range(4):
        a(mf(ACC + 16 * b, OLD + 2 * b, SEL, ACC + 16 * b))
    a(f's_mov_b32 s{sNB}, s{sNBn}')
    a(f's_mov_b32 s{sNFW}, s{sNFn}')
    a('s_waitcnt lgkmcnt(0)')
    for b in range(4):
        acc = ACC + 16 * b
        for j in range(8):
            a(f'v_cvt_pk_bf16_f32 v{acc + j}, v{acc + 2 * j}, v{acc + 2 * j + 1}')
            if j == 5:
                k = 2 * b
                a(mf(D[0], (EE + 4 * k) if k < 4 else (WXH + 4 * (k - 4)), acc, None if k == 0 else D[0]))
            if j == 1 and b > 0:
                k = 2 * b - 1
                a(mf(D[0], (EE + 4 * k) if k < 4 else (WXH + 4 * (k - 4)), acc - 16 + 4, D[0]))
    a(f's_mov_b64 exec, {s(sMa, 2)}')
    a(f'ds_write_b128 v{T1}, {v(ACC, 4)}')
    a('s_mov_b64 exec, -1')
    a(mf(D[0], WXH + 12, ACC + 48 + 4, D[0]))
    a(f's_mov_b64 exec, {s(sMa, 2)}')
    for k in range(1, 8):
        a(f'ds_write_b128 v{T1}, {v(ACC + 16 * (k // 2) + 4 * (k % 2), 4)} offset:{32 * k}')
    a(f's_mov_b64 exec, {s(sMb, 2)}')
    a(f'v_add_f32 v{vT}, v{vT}, v{D[0]}')
    a(f'ds_write_b32 v{T3}, v{vT}')
    set_flag(a)


def gen_k2(a):
    _stamp[0] = 0
    a('k2_kernel:')
    a('s_cmp_ge_u32 s2, 256')
    a('s_cbranch_scc1 K2_END')
    if OPT.get('stamps'):
        a('s_memrealtime s[100:101]')
        a('s_waitcnt lgkmcnt(0)')
        a(f's_mov_b32 s{sBatch}, s100')
    a('s_load_dwordx16 s[4:19], s[0:1], 0')
    a('s_load_dwordx2 s[20:21], s[0:1], 64')
    a('s_load_dwordx2 s[24:25], s[0:1], 80')
    a(f'v_lshrrev_b32 v{T0}, 6, v0')
    a(f'v_and_b32 v{vLANE}, 63, v0')
    a(f'v_readfirstlane_b32 s{sW}, v{T0}')
    a(f's_and_b32 s{sBin}, s2, 7')
    a(f's_lshl_b32 s{sBin}, s{sBin}, 5')
    a(f's_lshr_b32 s{sT}, s2, 3')
    a(f's_add_u32 s{sBin}, s{sBin}, s{sT}')
    a(f's_mul_i32 s{sN0}, s{sBin}, {NB}')
    a(f's_sub_u32 s{sNV}, {N}, s{sN0}')
    a(f's_min_u32 s{sNV}, s{sNV}, {NB}')
    a(f'v_lshrrev_b32 v{T1}, 1, v0')
    a(f'v_lshlrev_b32 v{T2}, 10, v{T1}')
    a(f's_lshl_b32 s{sT}, s{sBin}, 2')
    a(f'v_lshrrev_b32 v24, 4, v{vLANE}')
    a(f's_and_b32 s{sT2}, s{sW}, 3')
    a(f's_lshl_b32 s{sT2}, s{sT2}, 2')
    a(f'v_add_u32 v25, s{sT2}, v24')
    a(f'v_and_b32 v26, 15, v{vLANE}')
    a('v_xor_b32 v25, v25, v26')
    a('v_lshlrev_b32 v25, 4, v25')
    a(f'v_lshl_or_b32 v{T3}, v24, 8, v25')
    a(f'v_lshlrev_b32 v{vLin}, 4, v{vLANE}')
    a(f's_lshl_b32 s{sRing}, s{sW}, 13')
    a(f's_add_u32 s{sRing}, s{sRing}, {RING}')
    a('s_waitcnt lgkmcnt(0)')
    stamp(a)
    srd(a, sTT, 24, WS_TAB, NCH * 1024)
    a(f'buffer_load_dword v{vTab}, v{T2}, {s(sTT, 4)}, s{sT} offen')
    a(f's_lshl_b32 s{sT}, s{sN0}, 8')
    a(f's_lshl_b32 s{sT2}, s{sNV}, 8')
    srd(a, sH, 4, f's{sT}', f's{sT2}')
    srd(a, sOUT, 20, f's{sT}', f's{sT2}')
    srd(a, sWF, 24, WS_WF, WF_SIZE)
    a(f's_lshl_b32 s{sT}, s{sW}, 10')
    for m in range(3):
        a(f's_add_u32 m0, s{sT}, {MI + m * 8192}')
        a(f's_add_u32 s{sT2}, s{sT}, {m * 8192}')
        a(f'buffer_load_dwordx4 v{T3}, {s(sH, 4)}, s{sT2} offen lds')
    a(f's_lshl_b32 s{sT}, s{sW}, 12')
    for m in range(4):
        a(f's_add_u32 m0, s{sT}, {RING + m * 1024}')
        a(f's_add_u32 s{sT2}, s{sT}, {m * 1024}')
        a(f'buffer_load_dwordx4 v{vLin}, {s(sWF, 4)}, s{sT2} offen lds')
    a(f's_mov_b32 s{sT2}, {WF_CST}')
    a(f'buffer_load_dwordx4 v[28:31], v{vLin}, {s(sWF, 4)}, s{sT2} offen')
    a(f's_lshl_b32 s{sT}, s{sN0}, 4')
    a(f's_add_u32 s{sT}, s{sT}, {WS_POSF}')
    a(f's_lshl_b32 s{sT2}, s{sNV}, 4')
    srd(a, sPOSF, 24, f's{sT}', f's{sT2}')
    a(f's_cmp_lg_u32 s{sW}, 0')
    a('s_cbranch_scc1 X1')
    a(f's_mov_b32 m0, {MI + 24576}')
    a(f's_movk_i32 s{sT2}, 24576')
    a(f'buffer_load_dwordx4 v{T3}, {s(sH, 4)}, s{sT2} offen lds')
    a('X1:')
    a(f's_cmp_lg_u32 s{sW}, 1')
    a('s_cbranch_scc1 X2')
    a(f's_mov_b32 m0, {PTILE}')
    a(f'buffer_load_dwordx4 v{vLin}, {s(sPOSF, 4)}, 0 offen lds')
    a('X2:')
    a(f's_cmp_lg_u32 s{sW}, 2')
    a('s_cbranch_scc1 X3')
    a(f's_mov_b32 m0, {PTILE}')
    a(f's_mov_b32 exec_hi, {(1 << (NB - 96)) - 1}')
    a(f'buffer_load_dwordx4 v{vLin}, {s(sPOSF, 4)}, 0 offen offset:1024 lds')
    a('s_mov_b64 exec, -1')
    a('X3:')
    a(f's_cmp_lg_u32 s{sW}, 3')
    a('s_cbranch_scc1 X4')
    a(f's_mov_b32 m0, {WXT}')
    a(f's_mov_b32 s{sT2}, {WF_WX}')
    a('s_mov_b64 exec, 0xffff')
    a(f'buffer_load_dwordx4 v{vLin}, {s(sWF, 4)}, s{sT2} offen lds')
    a('s_mov_b64 exec, -1')
    a('X4:')
    srd(a, sPOSF, 24, WS_POSF, N * 16)
    srd(a, sREC, 24, WS_REC, NCH * CH * 8)
    srd(a, sQ, 24, 0, N * 256)
    a(f's_mul_i32 s{sT}, s{sN0}, 6')
    a(f's_add_u32 s{sT}, s{sT}, {N * 256}')
    srd(a, sOUTP, 20, f's{sT}', 1024)
    a(f's_movk_i32 s{s256}, 256')
    a(f's_movk_i32 s{s272}, {MIS}')
    a(f's_mov_b32 s{sFlagV}, 1')
    a(f's_mov_b32 s{sSlow}, 0')
    a('v_lshlrev_b32 v24, 2, v0')
    a('v_mov_b32 v25, 0')
    a(f'ds_write_b32 v24, v25 offset:{HIST}')
    e, hh = 26, 27
    a(f'v_and_b32 v{e}, 31, v{vLANE}')
    a(f'v_lshrrev_b32 v{hh}, 5, v{vLANE}')
    a(f's_cmp_lg_u32 s{sW}, 4')
    a('s_cbranch_scc1 X5')
    a('s_mov_b64 exec, 0xff')
    a(f'v_lshlrev_b32 v24, 2, v{vLANE}')
    a(f'v_add_u32 v24, {FLAGS}, v24')
    a('ds_write_b32 v24, v25')
    a(f'v_mov_b32 v24, {LONGF}')
    a('ds_write_b32 v24, v25')
    a('s_mov_b64 exec, 0xffff')
    a(f'v_and_b32 v24, 3, v{vLANE}')
    a('v_lshlrev_b32 v24, 4, v24')
    a('v_mov_b32 v32, 0x3f80')
    a('v_mov_b32 v33, 0')
    a('v_lshlrev_b64 v[32:33], v24, v[32:33]')
    a(f'v_add_u32 v24, 4, v{vLANE}')
    a('v_and_b32 v24, 8, v24')
    a('v_cmp_eq_u32 vcc, 0, v24')
    a('v_cndmask_b32 v32, 0, v32, vcc')
    a('v_cndmask_b32 v33, 0, v33, vcc')
    a(f'v_lshlrev_b32 v24, 3, v{vLANE}')
    a(f'v_add_u32 v24, {LUT}, v24')
    a('ds_write_b64 v24, v[32:33]')
    a('s_mov_b64 exec, -1')
    a('X5:')
    a(f'v_lshlrev_b32 v24, 3, v{hh}')
    a(f'v_sub_u32 v24, v{e}, v24')
    a('v_and_b32 v25, 1, v24')
    a('v_lshlrev_b32 v25, 4, v25')
    a('v_mov_b32 v32, 0x3f80')
    a('v_lshlrev_b32 v25, v25, v32')
    a('v_ashrrev_i32 v24, 1, v24')
    for rho in range(4):
        a(f'v_cmp_eq_u32 vcc, {rho}, v24')
        a(f'v_cmp_eq_u32 s[{sMa}:{sMa + 1}], {8 + rho}, v24')
        a(f'v_cndmask_b32 v{I0 + rho}, 0, v25, vcc')
        a(f'v_cndmask_b32 v{I1 + rho}, 0, v25, s[{sMa}:{sMa + 1}]')
    a(f'v_lshrrev_b32 v{vFslot}, 2, v{e}')
    a(f'v_lshlrev_b32 v24, 2, v{hh}')
    a(f'v_sub_u32 v24, v{vFslot}, v24')
    a('v_lshlrev_b32 v25, 4, v24')
    a('v_mov_b32 v33, 0')
    a('v_lshlrev_b64 v[32:33], v25, v[32:33]')
    a('v_cmp_gt_u32 vcc, 4, v24')
    a(f's_mov_b32 s{sMM}, 0x88888888')
    a(f's_mov_b32 s{sMM + 1}, 0x88888888')
    a(f's_and_b64 vcc, vcc, {s(sMM, 2)}')
    a(f'v_cndmask_b32 v{SEL}, 0, v32, vcc')
    a(f'v_cndmask_b32 v{SEL + 1}, 0, v33, vcc')
    a(f'v_mov_b32 v{SEL + 2}, 0')
    a(f'v_mov_b32 v{SEL + 3}, 0')
    for b in range(4):
        a(f'v_mov_b32 v{BP + 4 * b + 3}, 0')
    a(f'v_bfe_u32 v24, v{e}, 2, 2')
    a(f'v_xor_b32 v24, v24, v{hh}')
    a('v_lshlrev_b32 v24, 4, v24')
    a(f'v_lshl_or_b32 v24, v{e}, 6, v24')
    a(f'v_add_u32 v{vAQ0}, s{sRing}, v24')
    a(f'v_xor_b32 v{vAQ1}, 32, v{vAQ0}')
    a(f'v_and_b32 v24, 3, v{vLANE}')
    a(f'v_lshrrev_b32 v25, 4, v{vLANE}')
    a('v_xor_b32 v25, v24, v25')
    a(f'v_lshlrev_b32 v{vDMAc}, 4, v25')
    a(f'v_lshlrev_b32 v25, 6, v{hh}')
    a(f'v_add_u32 v{vLUTc}, {LUT}, v25')
    a(f's_lshl_b32 s{sT}, s{sW}, 11')
    a(f'v_bfe_u32 v25, v{e}, 1, 3')
    a('v_lshlrev_b32 v25, 3, v25')
    a(f'v_lshl_or_b32 v25, v{e}, 6, v25')
    a(f'v_add_u32 v{vSc}, s{sT}, v25')
    r_, g1 = 32, 33
    a(f'v_bfe_u32 v{r_}, v{vLANE}, 2, 2')
    a(f'v_bfe_u32 v{g1}, v{vLANE}, 4, 1')
    a(f'v_lshl_add_u32 v{vBPslot}, v{hh}, 2, v{r_}')
    a(f'v_lshl_or_b32 v25, v{g1}, 2, v24')
    a(f'v_lshrrev_b32 v34, 1, v{vBPslot}')
    a('v_xor_b32 v25, v25, v34')
    a('v_lshlrev_b32 v25, 3, v25')
    a(f'v_lshl_or_b32 v25, v{vBPslot}, 6, v25')
    a(f'v_add_u32 v{vStrE}, s{sT}, v25')
    a(f'v_xor_b32 v{vStrO}, 32, v{vStrE}')
    a(f'v_lshlrev_b32 v25, 5, v{g1}')
    a('v_lshl_or_b32 v34, v24, 3, v25')
    a(f'v_add_u32 v{vBPc}, {PT}, v34')
    a('v_and_b32 v34, 1, v24')
    a('v_lshl_or_b32 v25, v34, 4, v25')
    a('v_lshrrev_b32 v34, 1, v24')
    a('v_lshl_or_b32 v25, v34, 3, v25')
    a(f'v_add_u32 v{vOldc}, {MI}, v25')
    a(f'v_lshlrev_b32 v25, 4, v{hh}')
    a(f'v_add_u32 v{vFc}, {MI}, v25')
    a(f'v_add_u32 v{vWx}, {WXT}, v25')
    a(f'v_lshlrev_b32 v25, 2, v24')
    a(f'v_add_u32 v{vFp}, {MI + 256}, v25')
    a(f's_lshr_b32 s{sT}, s{sW}, 1')
    a(f's_lshl_b32 s{sT}, s{sT}, 13')
    a(f's_and_b32 s{sT2}, s{sW}, 1')
    a(f's_lshl_b32 s{sT2}, s{sT2}, 7')
    a(f's_add_u32 s{sT2}, s{sT2}, s{sT}')
    a(f'v_lshlrev_b32 v25, 10, v{hh}')
    a(f'v_lshl_or_b32 v25, v{e}, 2, v25')
    a(f'v_add_u32 v{vO}, s{sT2}, v25')
    a(f'v_and_b32 v25, 15, v{e}')
    a(f'v_xor_b32 v25, v25, v{hh}')
    a('v_lshlrev_b32 v25, 4, v25')
    a(f'v_lshl_or_b32 v25, v{e}, 8, v25')
    a(f's_add_u32 s{sT}, s{sT}, {MI}')
    a(f'v_add_u32 v{OLD}, s{sT}, v25')
    for k in range(1, 8):
        a(f'v_xor_b32 v{OLD + k}, {k << 5}, v{OLD}')
    a(f's_and_b32 s{sT2}, s{sW}, 1')
    a(f's_lshl_b32 s{sT2}, s{sT2}, 14')
    a(f's_add_u32 s{sT2}, s{sT2}, {RING}')
    a(f'v_add_u32 v{vSA}, s{sT2}, v{vLin}')
    a(f's_movk_i32 s{sT}, {CH}')
    a(f'v_mul_u32_u24 v{T1}, s{sT}, v{T1}')
    a('v_and_b32 v24, 1, v0')
    a('v_lshlrev_b32 v24, 1, v24')
    a('s_waitcnt vmcnt(8)')
    stamp(a)
    a(f'v_lshrrev_b32 v25, 16, v{vTab}')
    a(f'v_sub_u32 v{vRem}, v25, v24')
    a(f'v_and_b32 v25, 0xffff, v{vTab}')
    a(f'v_add3_u32 v25, v25, v24, v{T1}')
    a('v_lshlrev_b32 v25, 3, v25')
    for k in range(6):
        a(f'v_cmpx_lt_i32 vcc, {4 * k}, v{vRem}')
        a('s_or_b32 exec_lo, exec_lo, 1')
        a(f'buffer_load_dwordx4 {v(32 + 4 * k, 4)}, v25, {s(sREC, 4)}, 0 offen offset:{32 * k}')
    a('s_mov_b64 exec, -1')
    a(f's_lshl_b32 s{sT}, s{sW}, 12')
    for m in range(4):
        a(f's_add_u32 m0, s{sT}, {RING + 32768 + m * 1024}')
        a(f's_add_u32 s{sT2}, s{sT}, {32768 + m * 1024}')
        a(f'buffer_load_dwordx4 v{vLin}, {s(sWF, 4)}, s{sT2} offen lds')
    a('s_waitcnt vmcnt(10) lgkmcnt(0)')
    for b in range(4):
        a(f'v_mov_b32 v{BP + 4 * b + 2}, v{28 + b}')
    a('s_barrier')
    stamp(a)
    for k in range(8):
        a(f'ds_read_b128 {v(160 + 4 * k, 4)}, v{OLD + k}')
        a(f'ds_read_b128 {v(64 + 4 * k, 4)}, v{vSA} offset:{k * 1024}')
        a(f'ds_read_b128 {v(96 + 4 * k, 4)}, v{vSA} offset:{8192 + k * 1024}')
        if k >= 3:
            kk = k - 3
            a('s_waitcnt lgkmcnt(9)')
            mfma(a, 128, 160 + 4 * kk, 64 + 4 * kk, None if kk == 0 else 128)
            mfma(a, 144, 160 + 4 * kk, 96 + 4 * kk, None if kk == 0 else 144)
    for kk in range(5, 8):
        a(f's_waitcnt lgkmcnt({3 * (7 - kk)})')
        mfma(a, 128, 160 + 4 * kk, 64 + 4 * kk, 128)
        mfma(a, 144, 160 + 4 * kk, 96 + 4 * kk, 144)
    a(f'v_lshrrev_b32 v25, 16, v{vTab}')
    a('v_cmp_lt_u32 vcc, 24, v25')
    a('s_cmp_eq_u64 vcc, 0')
    a('s_cbranch_scc1 NOLONG')
    a(f'v_mov_b32 v24, {LONGF}')
    a('v_mov_b32 v25, 1')
    a('ds_write_b32 v24, v25')
    a('NOLONG:')
    a('s_waitcnt vmcnt(4)')
    stamp(a)
    hist(a, slots_fast(), 'F')
    a(f's_mov_b32 s{sT}, {NL2E:#x}')
    for i in range(32):
        a(f'v_mul_f32 v{128 + i}, s{sT}, v{128 + i}')
    for i in range(16):
        a(f'v_cvt_pk_bf16_f32 v{128 + i}, v{128 + i}, v{144 + i}')
    a(f'v_add_u32 v24, {PT}, v{vO}')
    a(f's_cmp_ge_u32 s{sW}, 6')
    a('s_cbranch_scc1 PW3')
    for i in range(16):
        a(f'ds_write_b32 v24, v{128 + i} offset:{(8 * (i // 4) + i % 4) * 256}')
    a('s_branch PWD')
    a('PW3:')
    a('s_mov_b32 exec_hi, 0')
    for i in range(NB - 96):
        a(f'ds_write_b32 v24, v{128 + i} offset:{i * 256}')
    a('s_mov_b64 exec, -1')
    a('PWD:')
    a('s_waitcnt vmcnt(0) lgkmcnt(0)')
    a('s_barrier')
    stamp(a)
    a(f'ds_read_b128 v[128:131], v{vLin} offset:{HIST}')
    a(f'v_mov_b32 v24, {LONGF}')
    a('ds_read_b32 v132, v24')
    for k in range(11):
        a(f'ds_read_b128 {v(64 + 4 * k, 4)}, v{vSA} offset:{32768 + k * 1024}')
    a('s_waitcnt lgkmcnt(11)')
    a('v_add_u32 v129, v128, v130')
    a('v_mov_b32 v131, v129')
    scan64(a, 131)
    a(f'v_readfirstlane_b32 s{sSlow}, v132')
    a('v_sub_u32 v133, v131, v129')
    a('v_add_u32 v134, v133, v128')
    a(f'v_add_u32 v136, {REC // 16}, v133')
    a(f'v_add_u32 v137, {REC // 16}, v134')
    a(f'ds_write2_b32 v{vLin}, v136, v137 offset0:1 offset1:3')
    a(f'ds_read2_b32 v[138:139], v{vLin} offset0:17 offset1:19')
    a(f'v_readlane_b32 s{sL}, v131, 63')
    a('s_waitcnt lgkmcnt(4)')
    for k in range(11, 16):
        a(f'ds_read_b128 {v(64 + 4 * k, 4)}, v{vSA} offset:{32768 + k * 1024}')
    for i in range(4):
        a(f'v_mov_b32 v{140 + i}, 0')
    a('v_lshlrev_b32 v24, 4, v0')
    a(f'v_add_u32 v24, {MI}, v24')
    for i in range(3):
        a(f'ds_write_b128 v24, v[140:143] offset:{i * 8192}')
    a(f'v_cmpx_gt_u32 vcc, {(NB * MIS - 3 * 8192) // 16}, v0')
    a(f'ds_write_b128 v24, v[140:143] offset:{3 * 8192}')
    a('s_mov_b64 exec, -1')
    a('v_cmp_lt_u32 vcc, 0, v128')
    a(f'v_cmp_lt_u32 {s(sMa, 2)}, 0, v130')
    a(f's_flbit_i32_b64 s{sT}, vcc')
    a(f's_flbit_i32_b64 s{sT2}, {s(sMa, 2)}')
    a(f's_lshl_b32 s{sT}, s{sT}, 1')
    a(f's_lshl_b32 s{sT2}, s{sT2}, 1')
    a(f's_add_u32 s{sT}, s{sT}, 1')
    a(f's_min_u32 s{sT}, s{sT}, s{sT2}')
    a(f's_sub_u32 s{sNB}, 127, s{sT}')
    a('s_waitcnt lgkmcnt(8)')
    a(f'v_subrev_u32 v138, {REC // 16}, v138')
    a(f'v_subrev_u32 v139, {REC // 16}, v139')
    a(f'v_cmp_gt_u32 vcc, s{sL}, v138')
    a(f'v_cmp_gt_u32 {s(sMa, 2)}, s{sL}, v139')
    a('v_add_u32 v134, -1, v134')
    a('v_add_u32 v135, -1, v131')
    a('v_xor_b32 v134, v134, v138')
    a('v_xor_b32 v135, v135, v139')
    a(f'v_cmp_gt_u32 {s(sMb, 2)}, 32, v134')
    a(f's_and_b64 vcc, vcc, {s(sMb, 2)}')
    a(f'v_cmp_gt_u32 {s(sMb, 2)}, 32, v135')
    a(f's_and_b64 {s(sMa, 2)}, {s(sMa, 2)}, {s(sMb, 2)}')
    a(f's_or_b64 vcc, vcc, {s(sMa, 2)}')
    a('s_and_b32 vcc_hi, vcc_hi, 0x0fffffff')
    a('s_cmp_lg_u64 vcc, 0')
    a(f's_cselect_b32 s{sSlow}, 1, s{sSlow}')
    a(f's_cmp_gt_u32 s{sL}, {CAP}')
    a(f's_cselect_b32 s{sSlow}, 1, s{sSlow}')
    if OPT.get('forceslow'):
        a(f's_mov_b32 s{sSlow}, 1')
    a(f's_cmp_lg_u32 s{sSlow}, 0')
    a('s_cbranch_scc1 SLOW_ENTRY')
    scatter(a, slots_fast(), 'F')
    a(f's_add_u32 s{sT}, s{sL}, 31')
    a(f's_and_b32 s{sT}, s{sT}, -32')
    a(f'v_add_u32 v24, s{sL}, v{vLANE}')
    a(f'v_cmpx_gt_u32 vcc, s{sT}, v24')
    a(f's_lshl_b32 s{sT2}, s{sNB}, 3')
    a(f's_or_b32 s{sT2}, s{sT2}, 0x7f000000')
    a(f'v_mov_b32 v141, s{sT2}')
    a(f'v_add_u32 v24, {REC // 16}, v24')
    a('v_lshlrev_b32 v24, 4, v24')
    a('ds_write_b128 v24, v[140:143]')
    a('s_mov_b64 exec, -1')
    a(f's_mov_b32 s{sL}, s{sT}')
    a('s_waitcnt lgkmcnt(0)')
    a('s_barrier')
    a('AFTER_B3:')
    stamp(a)
    a(f's_lshr_b32 s{sT}, s{sL}, 5')
    a(f's_lshr_b32 s{sNU}, s{sT}, 3')
    a(f's_and_b32 s{sT}, s{sT}, 7')
    a(f's_mul_i32 s{sU0}, s{sNU}, s{sW}')
    a(f's_min_u32 s{sT2}, s{sW}, s{sT}')
    a(f's_add_u32 s{sU0}, s{sU0}, s{sT2}')
    a(f's_cmp_lt_u32 s{sW}, s{sT}')
    a(f's_addc_u32 s{sNU}, s{sNU}, 0')
    a(f's_cmp_eq_u32 s{sNU}, 0')
    a('s_cbranch_scc1 EMPTY_WAVE')
    a(f's_lshl_b32 s{sT}, s{sU0}, 9')
    a(f's_add_u32 s{sT}, s{sT}, {REC}')
    a(f'v_lshrrev_b32 v24, 2, v{vLANE}')
    a('v_lshlrev_b32 v24, 4, v24')
    a(f'v_add3_u32 v{vX2A}, v24, s{sT}, 4')
    a(f'ds_read2_b32 {v(vDA0, 2)}, v{vX2A} offset0:0 offset1:64')
    a(f'v_add_u32 v26, s{sT}, v{vLin}')
    for k in range(4):
        a(f'ds_read_b64 {v(128 + 4 * k, 2)}, v26 offset:{k * 1024}')
    a(f'ds_read2_b32 v[28:29], v{vX2A} offset0:128 offset1:192')
    a(f'v_and_b32 v24, 31, v{vLANE}')
    a(f'v_lshl_add_u32 v{vRecA}, v24, 4, s{sT}')
    a(f'v_add_u32 v{vX2A}, 0x400, v{vX2A}')
    a(f's_mov_b32 s{sQ + 2}, {N * 256}')
    a('s_waitcnt lgkmcnt(5)')
    a(f'v_mad_u32_u16 v{vDA0}, v{vDA0}, s{s256}, v{vDMAc} op_sel:[1,0,0,0]')
    a(f'v_mad_u32_u16 v{vDA1}, v{vDA1}, s{s256}, v{vDMAc} op_sel:[1,0,0,0]')
    for bb in range(4):
        for x in dma_pair(bb):
            a(x)
    a(f's_lshl_b32 s{sT}, s{sW}, 11')
    a(f'v_add_u32 v24, s{sT}, v{vLin}')
    for i in range(4):
        a(f'v_mov_b32 v{T0 + i}, 0')
    a(f'ds_write_b128 v24, {v(T0, 4)}')
    a(f'ds_write_b128 v24, {v(T0, 4)} offset:1024')
    a(f's_lshl_b32 s{sT}, s{sNU}, 5')
    a(f's_mov_b32 s{sT2}, 0x7f000000')
    a('s_waitcnt lgkmcnt(2)')
    a(f'v_mad_u32_u16 v{vDA0}, v28, s{s256}, v{vDMAc} op_sel:[1,0,0,0]')
    a(f'v_mad_u32_u16 v{vDA1}, v29, s{s256}, v{vDMAc} op_sel:[1,0,0,0]')
    for k in range(4):
        X = 129 + 4 * k
        a(f'v_add_u32 v24, {64 * k}, v{vLANE}')
        a(f'v_cmp_gt_u32 vcc, s{sT}, v24')
        a(f'v_cmp_gt_u32 {s(80 + 2 * k, 2)}, s{sT2}, v{X}')
        a(f'v_lshrrev_b32 v25, 16, v{X}')
        a(f'v_lshlrev_b32 v25, 4, v25')
        a(f'v_and_b32 v27, 0x3f8, v{X}')
        a(f's_and_b64 {s(80 + 2 * k, 2)}, {s(80 + 2 * k, 2)}, vcc')
        a(f'v_lshlrev_b32 v27, 1, v27')
        a(f'v_add_u32 v27, {PTILE}, v27')
        a(f's_or_b64 exec, {s(80 + 2 * k, 2)}, 1')
        a(f'buffer_load_dwordx3 {v(144 + 4 * k, 3)}, v25, {s(sPOSF, 4)}, 0 offen')
        a(f'ds_read_b128 {v(240 + 4 * k, 4)}, v27')
        a('s_mov_b64 exec, -1')
    extra = []
    for k in range(4):
        X = 129 + 4 * k
        for hf in range(2):
            u = 2 * k + hf
            for reg, lane in ((sNF, 32 * hf), (sNL, 32 * hf + 31)):
                dst = reg + u // 4
                extra.append(f'v_readlane_b32 s{sT}, v{X}, {lane}')
                extra.append(f's_bfe_u32 s{sT}, s{sT}, 0x70003')
                if u % 4 == 0:
                    extra.append(f's_mov_b32 s{dst}, s{sT}')
                else:
                    extra.append(f's_lshl_b32 s{sT}, s{sT}, {8 * (u % 4)}')
                    extra.append(f's_or_b32 s{dst}, s{dst}, s{sT}')
    a(f's_cmp_lg_u32 s{sSlow}, 0')
    a('s_cbranch_scc1 NOZ0')
    z0_gemm(a, extra)
    a('s_branch Z0D')
    a('NOZ0:')
    for x in extra:
        a(x)
    a('Z0D:')
    a(f's_and_b32 s{sNFW}, s{sNF}, 0xff')
    a(f's_min_u32 s{sNB}, s{sNFW}, {NB - 8}')
    bp_load(a, sNB)
    a(f's_cmp_ge_u32 s{sNU}, 2')
    a(f's_cselect_b32 s{sQ + 2}, {N * 256}, 0')
    stamp(a)
    for k in range(4):
        R0, PS, PD = 128 + 4 * k, 144 + 4 * k, 240 + 4 * k
        a(f's_waitcnt vmcnt({3 - k}) lgkmcnt(4)')
        a(f's_mov_b64 exec, {s(80 + 2 * k, 2)}')
        for c in range(3):
            a(f'v_sub_f32 v{PD + c}, v{PD + c}, v{PS + c}')
        a(f'v_mul_f32 v{PD + 3}, v{PD}, v{PD}')
        a(f'v_fmac_f32 v{PD + 3}, v{PD + 1}, v{PD + 1}')
        a(f'v_fmac_f32 v{PD + 3}, v{PD + 2}, v{PD + 2}')
        a(f'v_cvt_pk_bf16_f32 v{R0 + 2}, v{PD}, v{PD + 1}')
        a(f'v_cvt_pk_bf16_f32 v{R0 + 3}, v{PD + 2}, 1.0')
        a(f'v_cvt_pk_bf16_f32 v{R0}, v{PD + 3}, v{R0}')
        a(f'ds_write_b128 v26, {v(R0, 4)} offset:{k * 1024}')
    a('s_mov_b64 exec, -1')
    a(f'ds_read_b128 {v(AP + 2, 4)}, v{vRecA}')
    a(f'ds_read_b128 {v(AQ, 4)}, v{vAQ0}')
    a(f'ds_read_b128 {v(AQ + 4, 4)}, v{vAQ1}')
    for k in range(4):
        a(f'ds_read_b128 {v(WXH + 4 * k, 4)}, v{vWx} offset:{128 + 32 * k}')
    a(f'v_add_u32 v{vRecA}, 0x200, v{vRecA}')
    a(f's_mov_b32 s{sMM}, 0x88888888')
    a(f's_mov_b32 s{sMM + 1}, 0x88888888')
    a(f's_mov_b32 s{sMP}, 0x77777777')
    a(f's_mov_b32 s{sMP + 1}, 0')
    a(f's_cmp_lg_u32 s{sSlow}, 0')
    a('s_cbranch_scc1 NOZS')
    z0_scale(a)
    a('NOZS:')
    a('s_waitcnt lgkmcnt(4)')
    a(f'v_and_or_b32 v{vT}, v{AP + 3}, 56, v{vLUTc}')
    a(f'v_bitop3_b32 v{vSA}, v{AP + 3}, 56, v{vSc} bitop3:0x6a')
    a(f'ds_read_b64 {v(AP, 2)}, v{vT}')
    for x in dma_pair(0):
        a(x)
    a('s_waitcnt lgkmcnt(0)')
    a(mf(D[0], AP, BP))
    a(mf(D[0], AQ, I0, D[0]))
    a(mf(D[0], AQ + 4, I1, D[0]))
    a(f'ds_read_b128 {v(AQ, 4)}, v{vAQ0} offset:2048')
    a(f'ds_read_b128 {v(AQ + 4, 4)}, v{vAQ1} offset:2048')
    stamp(a)
    if OPT.get('prio', 2):
        a(f's_cmp_lt_u32 s{sW}, 4')
        a('s_cbranch_scc1 NOPRIO')
        a('s_setprio 1')
        a('NOPRIO:')
    step(a, 0, True, False, 'I')
    a('s_branch BODY_F')
    a('FLUSH:')
    ustamp(a)
    flush(a)
    a(f's_cmp_eq_u32 s{sNU}, 0')
    a('s_cbranch_scc1 WAVE_DONE')
    for tag, first in (('F', True), ('C', False)):
        a(f'BODY_{tag}:')
        ustamp(a)
        if OPT.get('prio', 2):
            a(f's_cmp_gt_u32 s{sNU}, {OPT.get("prio", 2)}')
            a(f's_cbranch_scc1 KP_{tag}')
            a('s_setprio 0')
            a(f'KP_{tag}:')
        for b in (1, 2, 3):
            step(a, b, first, True, tag)
        a(f's_cmp_eq_u32 s{sNU}, 1')
        a(f's_cbranch_scc1 TAIL_{tag}')
        step(a, 0, first, True, tag)
        a(f's_cmp_lg_u32 s{sNew}, 0')
        a('s_cbranch_scc1 FLUSH')
        if first:
            pass
        else:
            a('s_branch BODY_C')
    for tag, first in (('F', True), ('C', False)):
        a(f'TAIL_{tag}:')
        for x in s_stage(3, first):
            a(x)
        if first:
            a('s_branch TAIL')
    a('TAIL:')
    ustamp(a)
    stamp(a)
    a(f's_and_b32 s{sNLW}, s{sNL}, 0xff')
    a(f's_mov_b32 s{sNU}, 0')
    end_loads(a)
    a(f's_cmp_eq_u32 s{sW}, 7')
    a('s_cbranch_scc1 FLUSH')
    a(f's_lshl_b32 s{sT}, s{sW}, 2')
    a(f's_add_u32 s{sT}, s{sT}, {FLAGS + 4}')
    a(f'v_mov_b32 v{T0}, s{sT}')
    a(f's_mov_b32 s{sT2}, 0x1000000')
    a('SPIN:')
    a(f'ds_read_b32 v{T1}, v{T0}')
    a('s_waitcnt lgkmcnt(0)')
    a(f'v_readfirstlane_b32 s{sT}, v{T1}')
    a(f's_cmp_eq_u32 s{sT}, s{sFlagV}')
    a('s_cbranch_scc1 FLUSH')
    a(f's_sub_u32 s{sT2}, s{sT2}, 1')
    a('s_cbranch_scc0 SPIN')
    a('s_branch FLUSH')
    a('EMPTY_WAVE:')
    set_flag(a)
    a(f's_cmp_lg_u32 s{sSlow}, 0')
    a('s_cbranch_scc1 EW1')
    z0_gemm(a)
    z0_scale(a)
    a('EW1:')
    end_loads(a)
    a('WAVE_DONE:')
    a('s_waitcnt vmcnt(0) lgkmcnt(0)')
    stamp(a)
    a('s_barrier')
    a(f's_cmp_eq_u32 s{sSlow}, 0')
    a('s_cbranch_scc1 EPI')
    a(f's_add_u32 s{sBatch}, s{sBatch}, 1')
    a(f's_lshl_b32 s{sT}, s{sBatch}, 10')
    a(f's_cmp_lt_u32 s{sT}, s{sLtot}')
    a('s_cbranch_scc1 SLOW_BATCH')
    a('EPI:')
    stamp(a)
    a(f's_lshr_b32 s{sT}, s{sW}, 1')
    a(f's_lshl_b32 s{sT}, s{sT}, 5')
    a(f'v_and_b32 v24, 31, v{vLANE}')
    a(f'v_add_u32 v24, s{sT}, v24')
    a(f'v_mad_u32_u24 v24, v24, s{s272}, v{vFc}')
    a(f's_and_b32 s{sT2}, s{sW}, 1')
    a(f's_lshl_b32 s{sT2}, s{sT2}, 15')
    a(f's_add_u32 s{sT2}, s{sT2}, {RING}')
    a(f'v_add_u32 v25, s{sT2}, v{vLin}')

    def woff(j, k):
        return j * 16384 + (k >> 2) * 8192 + (k & 3) * 1024
    for k in range(8):
        a(f'ds_read_b128 {v(160 + 4 * k, 4)}, v24 offset:{k * 32}')
        a(f'ds_read_b128 {v(64 + 4 * k, 4)}, v25 offset:{woff(0, k)}')
        a(f'ds_read_b128 {v(96 + 4 * k, 4)}, v25 offset:{woff(1, k)}')
        if k >= 3:
            kk = k - 3
            a('s_waitcnt lgkmcnt(9)')
            mfma(a, Z0, 160 + 4 * kk, 64 + 4 * kk, Z0)
            mfma(a, Z0 + 16, 160 + 4 * kk, 96 + 4 * kk, Z0 + 16)
    for kk in range(5, 8):
        a(f's_waitcnt lgkmcnt({3 * (7 - kk)})')
        mfma(a, Z0, 160 + 4 * kk, 64 + 4 * kk, Z0)
        mfma(a, Z0 + 16, 160 + 4 * kk, 96 + 4 * kk, Z0 + 16)
    a(f's_mul_i32 s{sT}, s{sNV}, 3')
    a(f'v_cmpx_gt_u32 vcc, s{sT}, v0')
    a('s_cbranch_execz NOPOS')
    a(f's_movk_i32 s{sT}, 21846')
    a(f'v_mul_u32_u24 v24, s{sT}, v0')
    a('v_lshrrev_b32 v24, 16, v24')
    a('v_mul_u32_u24 v25, 3, v24')
    a('v_sub_u32 v25, v0, v25')
    a('v_lshlrev_b32 v25, 2, v25')
    a(f'v_mad_u32_u24 v26, v24, s{s272}, v25')
    a(f'v_add_u32 v26, {MI + 256}, v26')
    a('v_lshl_add_u32 v27, v24, 4, v25')
    a(f'v_add_u32 v27, {PTILE}, v27')
    a('ds_read_b32 v26, v26')
    a('ds_read_b32 v27, v27')
    a(f's_mov_b32 s{sT}, {NLN2:#x}')
    a('v_lshlrev_b32 v24, 1, v0')
    a('s_waitcnt lgkmcnt(0)')
    a(f'v_fma_f32 v26, v26, s{sT}, v27')
    a('v_cvt_pk_bf16_f32 v26, v26, v26')
    a(f'buffer_store_short v26, v24, {s(sOUTP, 4)}, 0 offen')
    a('NOPOS:')
    a('s_mov_b64 exec, -1')
    TT = 192
    a(f's_mov_b32 s{sT}, {NLN2:#x}')
    for g in range(4):
        regs = [Z0 + 4 * g + r for r in range(4)] + [Z0 + 16 + 4 * g + r for r in range(4)]
        for i, y in enumerate(regs):
            a(f'v_exp_f32 v{TT + i}, v{y}')
        for i in range(4):
            a(f'v_pk_add_f32 {v(TT + 2 * i, 2)}, {v(TT + 2 * i, 2)}, 1.0 op_sel_hi:[1,0]')
        for i in range(8):
            a(f'v_rcp_f32 v{TT + i}, v{TT + i}')
        for r in range(4):
            hreg = D[1] + 4 * g + r
            a(f'v_lshlrev_b32 v{TT + 8 + r}, 16, v{hreg}')
            a(f'v_and_b32 v{TT + 12 + r}, 0xffff0000, v{hreg}')
        for i in range(4):
            a(f'v_pk_mul_f32 {v(TT + 2 * i, 2)}, {v(TT + 2 * i, 2)}, {v(regs[2 * i], 2)}')
        for i in range(8):
            a(f'v_fmac_f32 v{TT + 8 + i}, s{sT}, v{TT + i}')
        a(f's_movk_i32 s{sT2}, {g * 2048}')
        for r in range(4):
            o = TT + 16 + 4 * (g & 1) + r
            a(f'v_cvt_pk_bf16_f32 v{o}, v{TT + 8 + r}, v{TT + 12 + r}')
            a(f'buffer_store_dword v{o}, v{vO}, {s(sOUT, 4)}, s{sT2} offen offset:{r * 256}')
        if g == 0:
            a(f's_cmp_ge_u32 s{sW}, 6')
            a('s_cbranch_scc1 K2_FIN')
    a('K2_FIN:')
    if OPT.get('stamps'):
        stamp(a)
        srd(a, sTT, 24, 0x2000000, 0x100000)
        a(f's_lshl_b32 s{sT}, s{sBin}, 3')
        a(f's_add_u32 s{sT}, s{sT}, s{sW}')
        a(f's_lshl_b32 s{sT}, s{sT}, 6')
        a('s_mov_b64 exec, 1')
        a('v_mov_b32 v24, 0')
        for i in range(12):
            a(f'v_mov_b32 v25, s{88 + i}')
            a(f'buffer_store_dword v25, v24, {s(sTT, 4)}, s{sT} offen offset:{4 * i}')
        a(f's_getreg_b32 s{sT2}, hwreg(HW_REG_HW_ID)')
        a(f'v_mov_b32 v25, s{sT2}')
        a(f'buffer_store_dword v25, v24, {s(sTT, 4)}, s{sT} offen offset:48')
        a(f's_getreg_b32 s{sT2}, hwreg(HW_REG_XCC_ID)')
        a(f'v_mov_b32 v25, s{sT2}')
        a(f'buffer_store_dword v25, v24, {s(sTT, 4)}, s{sT} offen offset:52')
        a(f'v_mov_b32 v25, s{sL}')
        a(f'buffer_store_dword v25, v24, {s(sTT, 4)}, s{sT} offen offset:56')
        a(f'v_mov_b32 v25, s{sBatch}')
        a(f'buffer_store_dword v25, v24, {s(sTT, 4)}, s{sT} offen offset:60')
        a('s_waitcnt vmcnt(0)')
        a('s_memrealtime s[100:101]')
        a('s_waitcnt lgkmcnt(0)')
        a('v_mov_b32 v25, s100')
        a(f'buffer_store_dword v25, v24, {s(sTT, 4)}, s{sT} offen offset:52')
    a('K2_END:')
    a('s_endpgm')
    gen_slow(a)


def gen_slow(a):
    a('SLOW_ENTRY:')
    a(f's_mov_b32 s{sSlow}, 1')
    a(f's_mov_b32 s{sBatch}, 0')
    a('s_waitcnt lgkmcnt(0)')
    z0_gemm(a)
    z0_scale(a)
    a('s_barrier')
    a('SLOW_BATCH:')
    a(f's_add_u32 s{sFlagV}, s{sBatch}, 1')
    a('v_lshlrev_b32 v24, 2, v0')
    a('v_mov_b32 v25, 0')
    a(f'ds_write_b32 v24, v25 offset:{HIST}')
    a('v_lshrrev_b32 v24, 1, v0')
    a(f's_movk_i32 s{sT}, {CH}')
    a(f'v_and_b32 v26, 0xffff, v{vTab}')
    a(f'v_mad_u32_u24 v26, v24, s{sT}, v26')
    a(f'v_lshrrev_b32 v25, 16, v{vTab}')
    a('v_lshlrev_b32 v24, 2, v24')
    a(f'ds_write_b32 v24, v25 offset:{SEGL}')
    a(f'ds_write_b32 v24, v26 offset:{SEGS}')
    a('s_waitcnt lgkmcnt(0)')
    a('s_barrier')
    a(f'ds_read_b128 v[128:131], v{vLin} offset:{SEGL}')
    a('s_waitcnt lgkmcnt(0)')
    a('v_add_u32 v129, v128, v129')
    a('v_add_u32 v130, v129, v130')
    a('v_add_u32 v131, v130, v131')
    a('v_mov_b32 v132, v131')
    scan64(a, 132)
    a(f'v_readlane_b32 s{sLtot}, v132, 63')
    a('v_sub_u32 v136, v132, v131')
    a('v_add_u32 v137, v136, v128')
    a('v_add_u32 v138, v136, v129')
    a('v_add_u32 v139, v136, v130')
    a(f'ds_write_b128 v{vLin}, v[136:139] offset:{SEGC}')
    a(f's_lshl_b32 s{sT}, s{sBatch}, 10')
    a(f'v_add_u32 v140, s{sT}, v0')
    a('v_add_u32 v141, 0x200, v140')
    a('v_mov_b32 v142, 0')
    a('v_mov_b32 v143, 0')
    for st in (128, 64, 32, 16, 8, 4, 2, 1):
        for h in range(2):
            a(f'v_add_u32 v{144 + h}, {4 * st}, v{142 + h}')
            a(f'ds_read_b32 v{146 + h}, v{144 + h} offset:{SEGC}')
        a('s_waitcnt lgkmcnt(0)')
        for h in range(2):
            a(f'v_cmp_le_u32 vcc, v{146 + h}, v{140 + h}')
            a(f'v_cndmask_b32 v{142 + h}, v{142 + h}, v{144 + h}, vcc')
    for h in range(2):
        a(f'ds_read_b32 v{144 + h}, v{142 + h} offset:{SEGC}')
        a(f'ds_read_b32 v{146 + h}, v{142 + h} offset:{SEGS}')
    a(f'v_mov_b32 v{vRem}, 0')
    a('s_waitcnt lgkmcnt(0)')
    for h in range(2):
        a(f'v_sub_u32 v{144 + h}, v{140 + h}, v{144 + h}')
        a(f'v_add_lshl_u32 v{144 + h}, v{144 + h}, v{146 + h}, 3')
        a(f'v_cmpx_gt_u32 vcc, s{sLtot}, v{140 + h}')
        a(f'v_mov_b32 v{vRem}, {h + 1}')
        a(f'buffer_load_dwordx2 {v(128 + 2 * h, 2)}, v{144 + h}, {s(sREC, 4)}, 0 offen')
    a('s_mov_b64 exec, -1')
    a('s_waitcnt vmcnt(0)')
    hist(a, slots_slow(), 'S')
    a('s_waitcnt lgkmcnt(0)')
    a('s_barrier')
    a(f'ds_read_b128 v[136:139], v{vLin} offset:{HIST}')
    a('s_waitcnt lgkmcnt(0)')
    a('v_add_u32 v137, v136, v138')
    a('v_mov_b32 v139, v137')
    scan64(a, 139)
    a('v_sub_u32 v140, v139, v137')
    a('v_mov_b32_dpp v141, v140 quad_perm:[0,0,0,0] row_mask:0xf bank_mask:0xf')
    a('v_mov_b32_dpp v142, v139 quad_perm:[3,3,3,3] row_mask:0xf bank_mask:0xf')
    a('v_sub_u32 v140, v140, v141')
    a('v_sub_u32 v142, v142, v141')
    a('v_add_u32 v143, 31, v142')
    a('v_and_b32 v143, -32, v143')
    a(f'v_and_b32 v144, 3, v{vLANE}')
    a('v_cmp_eq_u32 vcc, 0, v144')
    a('v_cndmask_b32 v144, 0, v143, vcc')
    scan64(a, 144)
    a(f'v_readlane_b32 s{sL}, v144, 63')
    a('v_sub_u32 v145, v144, v143')
    a('v_add_u32 v146, v145, v140')
    a(f'v_add_u32 v146, {REC // 16}, v146')
    a('v_add_u32 v147, v146, v136')
    a(f'ds_write2_b32 v{vLin}, v146, v147 offset0:1 offset1:3')
    a('v_add_u32 v145, v145, v142')
    for i in range(4):
        a(f'v_mov_b32 v{148 + i}, 0')
    for g in range(13):
        a(f'v_readlane_b32 s{sT}, v145, {4 * g}')
        a(f'v_readlane_b32 s{sT2}, v144, {4 * g}')
        a(f'v_mov_b32 v149, {0x7f000000 | (min(8 * g + 7, NB - 1) << 3):#x}')
        a(f'v_add_u32 v24, s{sT}, v{vLANE}')
        a(f'v_cmpx_gt_u32 vcc, s{sT2}, v24')
        a(f'v_add_u32 v24, {REC // 16}, v24')
        a('v_lshlrev_b32 v24, 4, v24')
        a('ds_write_b128 v24, v[148:151]')
        a('s_mov_b64 exec, -1')
    scatter(a, slots_slow(), 'S')
    a('s_waitcnt lgkmcnt(0)')
    a('s_barrier')
    a('s_branch AFTER_B3')
```

```python
import sys, os
sys.path.insert(0, os.path.dirname(os.path.abspath(__file__)))
from asmlib import Asm, pad, v, s

N = 25000
E = 400000
NB = 98
CH = 1568
NCH = 256
NL2E = 0xBFB8AA3B
NLN2 = 0xBF317218

WS_Q = 0
WS_REC = 0x640000
WS_TAB = 0x980000
WS_WF = 0x9C0000
WF_CST = 3 * 32768
WF_WX = WF_CST + 1024
WF_SIZE = WF_WX + 256
WS_POSF = 0xA00000

OPT = dict(stamps=False)


def srd(a, d, base, off, size):
    if off == 0:
        a(f's_mov_b32 s{d}, s{base}')
        a(f's_mov_b32 s{d + 1}, s{base + 1}')
    else:
        a(f's_add_u32 s{d}, s{base}, {off}')
        a(f's_addc_u32 s{d + 1}, s{base + 1}, 0')
    a(f's_mov_b32 s{d + 2}, {size}')
    a(f's_mov_b32 s{d + 3}, 0x20000')


def scan64(a, r):
    for sh in (1, 2, 4, 8):
        a(f'v_add_u32_dpp v{r}, v{r}, v{r} row_shr:{sh} row_mask:0xf bank_mask:0xf bound_ctrl:1')
    a(f'v_add_u32_dpp v{r}, v{r}, v{r} row_bcast:15 row_mask:0xa bank_mask:0xf')
    a(f'v_add_u32_dpp v{r}, v{r}, v{r} row_bcast:31 row_mask:0xc bank_mask:0xf')


def mfma(a, d, A, B, C=None):
    c = '0' if C is None else v(C, 16)
    a(f'v_mfma_f32_32x32x16_bf16 {v(d, 16)}, {v(A, 4)}, {v(B, 4)}, {c}')


_st = [0]


def stamp1(a, real=False):
    if not OPT.get('stamps'):
        return
    i = _st[0]
    _st[0] += 1
    a('s_memrealtime s[90:91]' if real else 's_memtime s[90:91]')
    a('s_waitcnt lgkmcnt(0)')
    a(f's_mov_b32 s{76 + i}, s90')


def stamp1_out(a):
    if not OPT.get('stamps'):
        return
    a('s_mov_b64 exec, -1')
    a('s_waitcnt vmcnt(0)')
    stamp1(a)
    stamp1(a, True)
    srd(a, 92, 24, 0x2100000, 0x100000)
    a('s_lshl_b32 s90, s2, 3')
    a('s_add_u32 s90, s90, s3')
    a('s_lshl_b32 s90, s90, 6')
    a('s_mov_b64 exec, 1')
    a('v_mov_b32 v24, 0')
    for i in range(12):
        a(f'v_mov_b32 v25, s{76 + i}')
        a(f'buffer_store_dword v25, v24, s[92:95], s90 offen offset:{4 * i}')
    a('s_getreg_b32 s91, hwreg(HW_REG_HW_ID)')
    a('v_mov_b32 v25, s91')
    a('buffer_store_dword v25, v24, s[92:95], s90 offen offset:48')
    a('s_getreg_b32 s91, hwreg(HW_REG_XCC_ID)')
    a('v_mov_b32 v25, s91')
    a('buffer_store_dword v25, v24, s[92:95], s90 offen offset:52')


def gen_k1(a):
    HIST = 0
    SORT = 2048
    HL = 0
    WL = 32768
    a('k1_kernel:')
    a('s_cmp_ge_u32 s2, 512')
    a('s_cbranch_scc1 K1_END')
    _st[0] = 0
    stamp1(a, True)
    stamp1(a)
    a('s_load_dwordx16 s[4:19], s[0:1], 0')
    a('s_load_dwordx2 s[24:25], s[0:1], 80')
    a('v_lshrrev_b32 v1, 6, v0')
    a('v_and_b32 v2, 63, v0')
    a('v_readfirstlane_b32 s3, v1')
    a('s_cmp_ge_u32 s2, 256')
    a('s_cbranch_scc1 K1_GEMM')
    a('v_lshlrev_b32 v3, 2, v0')
    a('v_mov_b32 v4, 0')
    a(f'ds_write_b32 v3, v4 offset:{HIST}')
    a(f's_mul_i32 s26, s2, {CH}')
    a(f's_sub_u32 s27, {E}, s26')
    a('s_lshr_b32 s27, s27, 2')
    a(f's_min_u32 s27, s27, {CH // 4}')
    a('v_cmp_gt_u32 s[42:43], s27, v0')
    a('v_lshlrev_b32 v5, 4, v0')
    a('v_lshlrev_b32 v6, 3, v0')
    a('s_lshl_b32 s44, s26, 2')
    a('s_lshl_b32 s45, s26, 1')
    a('s_waitcnt lgkmcnt(0)')
    stamp1(a)
    srd(a, 28, 12, 0, E * 4)
    srd(a, 32, 10, 0, E * 4)
    srd(a, 36, 8, 0, E * 2)
    a('s_mov_b64 exec, s[42:43]')
    a('s_cbranch_execz K1_NOLOAD')
    a('buffer_load_dwordx4 v[8:11], v5, s[28:31], s44 offen')
    a('buffer_load_dwordx4 v[12:15], v5, s[32:35], s44 offen')
    a('buffer_load_dwordx2 v[16:17], v6, s[36:39], s45 offen')
    a('K1_NOLOAD:')
    a('s_mov_b64 exec, -1')
    srd(a, 48, 24, WS_REC, NCH * CH * 8)
    srd(a, 52, 24, WS_TAB, NCH * 1024)
    a('s_cmp_lg_u32 s3, 7')
    a('s_cbranch_scc1 K1_NOPREP')
    a('s_cmp_gt_u32 s2, 97')
    a('s_cbranch_scc1 K1_NOPREP')
    gen_prep(a)
    a('K1_NOPREP:')
    a('s_barrier')
    stamp1(a)
    a('s_mov_b64 exec, s[42:43]')
    a('s_cbranch_execz K1_NOHIST')
    a('s_movk_i32 s46, 10700')
    a(f's_movk_i32 s47, {-NB}')
    a('v_mov_b32 v7, 1')
    a('s_waitcnt vmcnt(2)')
    for i in range(4):
        a(f'v_mul_u32_u24 v{20 + i}, s46, v{8 + i}')
        a(f'v_lshrrev_b32 v{20 + i}, 20, v{20 + i}')
        a(f'v_lshlrev_b32 v{24 + i}, 3, v{20 + i}')
        a(f'ds_add_rtn_u32 v{28 + i}, v{24 + i}, v7 offset:{HIST}')
    for i in range(4):
        a(f'v_mad_i32_i24 v{8 + i}, v{20 + i}, s47, v{8 + i}')
        a(f'v_lshlrev_b32 v{8 + i}, 3, v{8 + i}')
    a('s_waitcnt vmcnt(0)')
    for i in range(4):
        a(f'v_lshl_or_b32 v{33 + 2 * i}, v{12 + i}, 16, v{8 + i}')
        if i % 2 == 0:
            a(f'v_lshlrev_b32 v{32 + 2 * i}, 16, v{16 + i // 2}')
        else:
            a(f'v_and_b32 v{32 + 2 * i}, 0xffff0000, v{16 + i // 2}')
    a('K1_NOHIST:')
    a('s_mov_b64 exec, -1')
    a('s_waitcnt lgkmcnt(0)')
    stamp1(a)
    a('s_barrier')
    stamp1(a)
    a('v_lshlrev_b32 v3, 5, v2')
    a(f'ds_read_b128 v[40:43], v3 offset:{HIST}')
    a(f'ds_read_b128 v[44:47], v3 offset:{HIST + 16}')
    a('s_waitcnt lgkmcnt(0)')
    a('v_add_u32 v41, v40, v42')
    a('v_add_u32 v43, v41, v44')
    a('v_add_u32 v45, v43, v46')
    a('v_mov_b32 v47, v45')
    scan64(a, 47)
    a('v_sub_u32 v48, v47, v45')
    a('v_add_u32 v49, v48, v40')
    a('v_add_u32 v50, v48, v41')
    a('v_add_u32 v51, v48, v43')
    a(f'v_add_u32 v3, {HIST}, v3')
    a('ds_write2_b32 v3, v48, v49 offset0:1 offset1:3')
    a('ds_write2_b32 v3, v50, v51 offset0:5 offset1:7')
    a('s_cmp_lg_u32 s3, 7')
    a('s_cbranch_scc1 K1_NOTAB')
    a('v_lshl_or_b32 v52, v40, 16, v48')
    a('v_lshl_or_b32 v53, v42, 16, v49')
    a('v_lshl_or_b32 v54, v44, 16, v50')
    a('v_lshl_or_b32 v55, v46, 16, v51')
    a('v_lshlrev_b32 v3, 4, v2')
    a('s_lshl_b32 s44, s2, 10')
    a('buffer_store_dwordx4 v[52:55], v3, s[52:55], s44 offen')
    a('K1_NOTAB:')
    a('s_mov_b64 exec, s[42:43]')
    a('s_cbranch_execz K1_NOSCAT')
    for i in range(4):
        a(f'ds_read_b32 v{20 + i}, v{24 + i} offset:{HIST + 4}')
    for i in range(4):
        a(f's_waitcnt lgkmcnt({3 - i + i})')
        a(f'v_add_lshl_u32 v{20 + i}, v{20 + i}, v{28 + i}, 3')
        a(f'ds_write_b64 v{20 + i}, v[{32 + 2 * i}:{33 + 2 * i}] offset:{SORT}')
    a('K1_NOSCAT:')
    a('s_mov_b64 exec, -1')
    a('s_waitcnt lgkmcnt(0)')
    a('s_barrier')
    stamp1(a)
    a('v_lshlrev_b32 v5, 4, v0')
    a(f'ds_read_b128 v[8:11], v5 offset:{SORT}')
    a(f'ds_read_b128 v[12:15], v5 offset:{SORT + 8192}')
    a(f's_mul_i32 s44, s2, {CH * 8}')
    a('s_add_u32 s45, s44, 8192')
    a(f'v_cmp_gt_u32 vcc, {CH * 8 // 16 - 512}, v0')
    a('s_waitcnt lgkmcnt(1)')
    a('buffer_store_dwordx4 v[8:11], v5, s[48:51], s44 offen')
    a('s_and_saveexec_b64 s[40:41], vcc')
    a('s_cbranch_execz K1_BE')
    a('s_waitcnt lgkmcnt(0)')
    a('buffer_store_dwordx4 v[12:15], v5, s[48:51], s45 offen')
    a('K1_BE:')
    stamp1(a)
    stamp1_out(a)
    a('s_endpgm')
    _st[0] = 2
    a('K1_GEMM:')
    a('s_sub_u32 s26, s2, 256')
    a(f's_mul_i32 s26, s26, {NB}')
    a(f's_sub_u32 s27, {N}, s26')
    a(f's_min_u32 s27, s27, {NB}')
    a('s_lshl_b32 s44, s26, 8')
    a('s_lshl_b32 s45, s27, 8')
    a('v_lshrrev_b32 v4, 4, v2')
    a('s_and_b32 s46, s3, 3')
    a('s_lshl_b32 s46, s46, 2')
    a('v_add_u32 v5, s46, v4')
    a('v_and_b32 v6, 15, v2')
    a('v_xor_b32 v5, v5, v6')
    a('v_lshlrev_b32 v5, 4, v5')
    a('v_lshl_or_b32 v3, v4, 8, v5')
    a('v_bfe_u32 v5, v2, 2, 2')
    a('v_xor_b32 v5, v5, v4')
    a('v_lshlrev_b32 v5, 6, v5')
    a('v_and_b32 v6, 3, v2')
    a('v_lshl_or_b32 v5, v6, 4, v5')
    a('v_lshl_or_b32 v7, v4, 8, v5')
    a('s_waitcnt lgkmcnt(0)')
    stamp1(a)
    srd(a, 28, 4, 's44', 's45')
    srd(a, 32, 14, 128 * 256, 32768)
    srd(a, 36, 24, 's44', 's45')
    a('s_lshl_b32 s47, s3, 10')
    for m in range(3):
        a(f's_add_u32 m0, s47, {HL + m * 8192}')
        a(f's_add_u32 s48, s47, {m * 8192}')
        a('buffer_load_dwordx4 v3, s[28:31], s48 offen lds')
    a('s_cmp_lg_u32 s3, 0')
    a('s_cbranch_scc1 K1_G1')
    a(f's_mov_b32 m0, {HL + 24576}')
    a('s_movk_i32 s48, 24576')
    a('buffer_load_dwordx4 v3, s[28:31], s48 offen lds')
    a('K1_G1:')
    a('s_lshl_b32 s47, s3, 12')
    for m in range(4):
        a(f's_add_u32 m0, s47, {WL + m * 1024}')
        a(f's_add_u32 s48, s47, {m * 1024}')
        a('buffer_load_dwordx4 v7, s[32:35], s48 offen lds')
    srd(a, 40, 6, 0, N * 6)
    a('s_lshl_b32 s48, s26, 4')
    a(f's_add_u32 s48, s48, {WS_POSF}')
    a('s_lshl_b32 s49, s27, 4')
    srd(a, 52, 24, 's48', 's49')
    a('s_cmp_gt_u32 s3, 1')
    a('s_cbranch_scc1 K1_G2')
    a('v_add_u32 v8, s26, v0')
    a('v_mul_u32_u24 v8, 6, v8')
    a('v_and_b32 v9, -4, v8')
    a('buffer_load_dwordx2 v[10:11], v9, s[40:43], 0 offen')
    a('v_lshlrev_b32 v8, 3, v8')
    a('v_lshlrev_b32 v9, 4, v0')
    a('v_mov_b32 v15, 0')
    a('s_waitcnt vmcnt(0)')
    a('v_alignbit_b32 v13, v11, v10, v8')
    a('v_lshrrev_b32 v14, v8, v11')
    a('v_lshlrev_b32 v12, 16, v13')
    a('v_and_b32 v13, 0xffff0000, v13')
    a('v_lshlrev_b32 v14, 16, v14')
    a('buffer_store_dwordx4 v[12:15], v9, s[52:55], 0 offen')
    a('K1_G2:')
    a('s_lshr_b32 s46, s3, 1')
    a('s_and_b32 s47, s3, 1')
    a('v_and_b32 v4, 31, v2')
    a('v_lshrrev_b32 v5, 5, v2')
    a('v_and_b32 v6, 15, v2')
    a('v_xor_b32 v6, v6, v5')
    a('v_lshlrev_b32 v6, 4, v6')
    a('v_lshl_or_b32 v6, v4, 8, v6')
    a('s_lshl_b32 s48, s46, 13')
    a(f's_add_u32 s48, s48, {HL}')
    a('v_add_u32 v16, s48, v6')
    for k in range(1, 8):
        a(f'v_xor_b32 v{16 + k}, {k << 5}, v16')
    a('v_bfe_u32 v6, v2, 2, 2')
    a('v_lshl_add_u32 v8, v5, 3, v6')
    a('v_lshlrev_b32 v8, 8, v8')
    a('v_bfe_u32 v9, v2, 4, 1')
    a('v_lshl_or_b32 v8, v9, 5, v8')
    a('v_and_b32 v9, 3, v2')
    a('v_lshl_or_b32 v8, v9, 3, v8')
    a(f'v_add_u32 v8, {WL}, v8')
    a('s_lshl_b32 s48, s47, 1')
    a('v_xor_b32 v9, s48, v6')
    a('v_lshl_or_b32 v24, v9, 6, v8')
    a('v_xor_b32 v25, 64, v24')
    a('s_lshl_b32 s48, s46, 13')
    a('s_lshl_b32 s49, s47, 7')
    a('s_add_u32 s48, s48, s49')
    a('v_lshlrev_b32 v9, 10, v5')
    a('v_lshl_or_b32 v9, v4, 2, v9')
    a('v_add_u32 v26, s48, v9')
    stamp1(a)
    a('s_waitcnt vmcnt(0)')
    stamp1(a)
    a('s_barrier')
    stamp1(a)
    A0, B0, AC = 32, 64, 96
    for k in range(8):
        a(f'ds_read_b128 {v(A0 + 4 * k, 4)}, v{16 + k}')
        a(f'ds_read_b64_tr_b16 {v(B0 + 4 * k, 2)}, v24 offset:{k * 4096}')
        a(f'ds_read_b64_tr_b16 {v(B0 + 4 * k + 2, 2)}, v24 offset:{k * 4096 + 1024}')
        if k >= 4:
            kk = k - 4
            a('s_waitcnt lgkmcnt(12)')
            mfma(a, AC, A0 + 4 * kk, B0 + 4 * kk, None if kk == 0 else AC)
    for kk in range(4):
        a(f'ds_read_b64_tr_b16 {v(B0 + 4 * kk, 2)}, v25 offset:{kk * 4096}')
        a(f'ds_read_b64_tr_b16 {v(B0 + 4 * kk + 2, 2)}, v25 offset:{kk * 4096 + 1024}')
        a(f's_waitcnt lgkmcnt({3 * (3 - kk) + 2 * (kk + 1)})')
        mfma(a, AC, A0 + 4 * (kk + 4), B0 + 4 * (kk + 4), AC)
    for kk in range(4):
        a(f'ds_read_b64_tr_b16 {v(B0 + 4 * (kk + 4), 2)}, v25 offset:{(kk + 4) * 4096}')
        a(f'ds_read_b64_tr_b16 {v(B0 + 4 * (kk + 4) + 2, 2)}, v25 offset:{(kk + 4) * 4096 + 1024}')
        a('s_waitcnt lgkmcnt(8)')
        mfma(a, AC + 16, A0 + 4 * kk, B0 + 4 * kk, None if kk == 0 else AC + 16)
    for kk in range(4, 8):
        a(f's_waitcnt lgkmcnt({2 * (7 - kk)})')
        mfma(a, AC + 16, A0 + 4 * kk, B0 + 4 * kk, AC + 16)
    stamp1(a)
    a(f's_mov_b32 s48, {NL2E:#x}')
    for i in range(16):
        a(f'v_mul_f32 v{AC + i}, s48, v{AC + i}')
    a('s_movk_i32 s49, 2048')
    a('s_movk_i32 s50, 4096')
    a('s_movk_i32 s51, 6144')
    for i in range(16):
        a(f'v_mul_f32 v{AC + 16 + i}, s48, v{AC + 16 + i}')
        a(f'v_cvt_pk_bf16_f32 v{32 + i}, v{AC + i}, v{AC + 16 + i}')
        so = ['0', 's49', 's50', 's51'][i // 4]
        a(f'buffer_store_dword v{32 + i}, v26, s[36:39], {so} offen offset:{(i % 4) * 256}')
    stamp1(a)
    stamp1_out(a)
    a('K1_END:')
    a('s_endpgm')


def gen_prep(a):
    srd(a, 56, 24, WS_WF, WF_SIZE)
    a('v_and_b32 v60, 31, v2')
    a('v_lshrrev_b32 v61, 5, v2')
    a('s_cmp_eq_u32 s2, 96')
    a('s_cbranch_scc1 K1_PCST')
    a('s_cmp_eq_u32 s2, 97')
    a('s_cbranch_scc1 K1_PWX')
    a('s_lshr_b32 s60, s2, 5')
    a('s_bfe_u32 s61, s2, 0x10004')
    a('s_bfe_u32 s62, s2, 0x10003')
    a('s_and_b32 s63, s2, 7')
    a('s_cmp_eq_u32 s60, 0')
    a('s_cselect_b32 s64, s14, s18')
    a('s_cselect_b32 s65, s15, s19')
    a('s_mov_b32 s66, 65536')
    a('s_mov_b32 s67, 0x20000')
    a('s_cselect_b32 s68, 0, 1')
    a('s_cselect_b32 s69, 5, 0')
    a('s_lshl_b32 s69, s62, s69')
    a('s_lshl_b32 s70, s61, 6')
    a('s_add_u32 s69, s69, s70')
    a('v_lshlrev_b32 v62, s68, v60')
    a('v_add_u32 v62, s69, v62')
    a('v_lshlrev_b32 v62, 1, v62')
    a('s_lshl_b32 s70, s63, 4')
    a('s_lshr_b32 s71, s63, 2')
    a('s_lshl_b32 s71, s71, 6')
    a('s_and_b32 s72, s63, 3')
    a('s_lshl_b32 s72, s72, 3')
    a('s_add_u32 s71, s71, s72')
    a('s_add_u32 s71, s71, 128')
    a('s_cmp_eq_u32 s60, 2')
    a('s_cselect_b32 s70, s71, s70')
    a('s_cselect_b32 s71, 9, 11')
    a('v_lshlrev_b32 v63, s71, v61')
    a('s_lshl_b32 s70, s70, 8')
    a('v_add3_u32 v62, v62, v63, s70')
    a('s_cmp_eq_u32 s60, 2')
    for t in range(8):
        tau = 32 * (t & 1) + 4 * (t >> 2) + ((t >> 1) & 1)
        a(f's_mov_b32 s72, {t * 256}')
        a(f's_cselect_b32 s72, {tau * 256}, s72')
        a(f'buffer_load_ushort v{64 + t}, v62, s[64:67], s72 offen')
    a('s_lshl_b32 s70, s2, 10')
    a('v_lshlrev_b32 v62, 4, v2')
    a('s_waitcnt vmcnt(0)')
    for t in range(4):
        a(f'v_lshl_or_b32 v{72 + t}, v{65 + 2 * t}, 16, v{64 + 2 * t}')
    a('buffer_store_dwordx4 v[72:75], v62, s[56:59], s70 offen')
    a('s_branch K1_NOPREP')
    a('K1_PCST:')
    srd(a, 64, 14, 256 * 256, 512)
    a('v_and_b32 v62, 1, v60')
    a('v_lshlrev_b32 v62, 5, v62')
    a('v_lshrrev_b32 v63, 1, v60')
    a('v_add_lshl_u32 v62, v62, v63, 1')
    for b in range(4):
        f0 = 64 * (b >> 1) + 16 * (b & 1)
        a(f'buffer_load_ushort v{64 + 2 * b}, v62, s[64:67], 0 offen offset:{f0 * 2}')
        a(f'buffer_load_ushort v{65 + 2 * b}, v62, s[64:67], 0 offen offset:{256 + f0 * 2}')
    a(f's_mov_b32 s70, {NL2E:#x}')
    a('v_cmp_eq_u32 vcc, 0, v61')
    a('s_waitcnt vmcnt(0)')
    for b in range(4):
        x, y = 64 + 2 * b, 65 + 2 * b
        a(f'v_lshlrev_b32 v{x}, 16, v{x}')
        a(f'v_lshlrev_b32 v{y}, 16, v{y}')
        a(f'v_mul_f32 v76, s70, v{x}')
        a(f'v_mul_f32 v77, s70, v{y}')
        a('v_cvt_pk_bf16_f32 v78, v76, v77')
        a('v_lshlrev_b32 v79, 16, v78')
        a('v_and_b32 v80, 0xffff0000, v78')
        a(f'v_fma_f32 v76, s70, v{x}, -v79')
        a(f'v_fma_f32 v77, s70, v{y}, -v80')
        a('v_cvt_pk_bf16_f32 v79, v76, v77')
        a(f'v_cndmask_b32 v{72 + b}, v79, v78, vcc')
    a('v_lshlrev_b32 v62, 4, v2')
    a(f's_mov_b32 s70, {WF_CST}')
    a('buffer_store_dwordx4 v[72:75], v62, s[56:59], s70 offen')
    a('s_branch K1_NOPREP')
    a('K1_PWX:')
    srd(a, 64, 16, 0, 256)
    a('v_bfe_u32 v62, v2, 3, 1')
    a('v_lshlrev_b32 v62, 6, v62')
    a('v_bfe_u32 v63, v2, 1, 2')
    a('v_lshl_or_b32 v62, v63, 3, v62')
    a('v_and_b32 v63, 1, v2')
    a('v_lshl_or_b32 v62, v63, 1, v62')
    a('v_lshlrev_b32 v62, 1, v62')
    for t in range(8):
        tau = 32 * (t & 1) + 4 * (t >> 2) + ((t >> 1) & 1)
        a(f'buffer_load_ushort v{64 + t}, v62, s[64:67], 0 offen offset:{tau * 2}')
    a('v_lshlrev_b32 v62, 4, v2')
    a(f's_mov_b32 s70, {WF_WX}')
    a('s_waitcnt vmcnt(0)')
    for t in range(4):
        a(f'v_lshl_or_b32 v{72 + t}, v{65 + 2 * t}, 16, v{64 + 2 * t}')
    a('buffer_store_dwordx4 v[72:75], v62, s[56:59], s70 offen')


def kd(name, vgpr, sgpr):
    return f'''.section .rodata,"a"
.p2align 6
.amdhsa_kernel {name}
  .amdhsa_next_free_vgpr {vgpr}
  .amdhsa_next_free_sgpr {sgpr}
  .amdhsa_accum_offset {(vgpr + 3) // 4 * 4}
  .amdhsa_group_segment_fixed_size 0
  .amdhsa_kernarg_size 88
  .amdhsa_user_sgpr_count 2
  .amdhsa_user_sgpr_kernarg_segment_ptr 1
  .amdhsa_system_sgpr_workgroup_id_x 1
  .amdhsa_float_denorm_mode_32 3
.end_amdhsa_kernel
'''


HEADER = '''; EGNN layer: k1 bins the edges by destination tile and computes Q = h @ w_e[128:256];
'''


def build(only_k1=False, verbose=False):
    from gen_k2 import gen_k2, K2_LDS
    out = HEADER
    out += '; @launch kernel=k1_kernel grid=(512,1,1) block=(512,1,1) lds=65536\n'
    if not only_k1:
        out += f'; @launch kernel=k2_kernel grid=(256,1,1) block=(512,1,1) lds={K2_LDS}\n'
    out += '.amdgcn_target "amdgcn-amd-amdhsa--gfx950"\n.text\n'
    a = Asm()
    gen_k1(a)
    out += '.globl k1_kernel\n.p2align 8\n.type k1_kernel,@function\n' + '\n'.join(pad(a.lines, verbose)) + '\n'
    if not only_k1:
        a = Asm()
        gen_k2(a)
        out += '.globl k2_kernel\n.p2align 8\n.type k2_kernel,@function\n' + '\n'.join(pad(a.lines, verbose)) + '\n'
    out += kd('k1_kernel', 128, 96 if OPT.get('stamps') else 80)
    if not only_k1:
        out += kd('k2_kernel', 256, 102)
    return out


if __name__ == '__main__':
    path = sys.argv[1] if len(sys.argv) > 1 else 'gather_scatter__cheap_equivariant_egnn__graph.s'
    for x in sys.argv[2:]:
        if '=' in x:
            k, val = x.split('=')
            OPT[k] = int(val)
    txt = build(only_k1='k1' in sys.argv[2:], verbose='-v' in sys.argv)
    open(path, 'w').write(txt)
    print('wrote', path, len(txt), 'bytes')
```

```python
from asmlib import v, s
import gen as G
from gen import N, E, NB, CH, NCH, NL2E, NLN2, WS_REC, WS_TAB, WS_WF, WF_CST, WF_WX, WF_SIZE, WS_POSF, srd, scan64, mfma
import sys
OPT = sys.modules['__main__'].OPT if hasattr(sys.modules['__main__'], 'OPT') else G.OPT

PTILE = 0
HIST = 1568
FLAGS = 2656
LONGF = HIST + 1080
LUT = 2688
WXT = 2816
SH = 3072
RING = 28672
PT = 94208
MIS = 272
MIR = 439
MI = MIR * MIS
REC = MI + NB * MIS
CAP = 2048
K2_LDS = 163840
SEGL, SEGC, SEGS = SH, SH + 1024, SH + 2048
assert PT + NB * 256 <= MI and REC % 16 == 0 and REC + CAP * 8 + 1024 <= K2_LDS

PS = 0
vLANE = 1
vAQ0, vAQ1, vDMAc, vDA0, vDA1, vRecA, vX2A, vLUTc, vSc, vSA = 3, 4, 5, 6, 7, 8, 9, 10, 11, 12
vStrE, vStrO, vBPslot, vBPc, vOldc, vFslot, vFp, RN, vWx, vT = 13, 14, 15, 16, 17, 18, 19, 20, 22, 23
SEG = 24
Z0 = 32
ACC = 64
D = (128, 144)
EE = 160
M = 176
AQ = 184
BP = 192
I0, I1 = 208, 212
AP = 216
SV = 220
OLD = 222
SEL = 230
vO, vLin = 234, 235
T0, T1, T2, T3 = 236, 237, 238, 239
WXH = 240
vTab, vRem = 20, 21
vWf = 12

sW = 3
sNV, sBin, sN0 = 22, 26, 27
sQ, sREC, sWF, sH, sPOSF, sOUT, sOUTP, sTT = 28, 32, 36, 40, 44, 48, 52, 56
sL, sNU, sU0, sRing = 60, 61, 62, 63
sNul, sNLn, sNullC = 64, 66, 67
sNB, sNFW, sNLW, sNBn, sNew, sNFn, sFlagV, sSlow, sBatch = 68, 69, 70, 71, 72, 73, 74, 75, 76
s256, s272, sT = 77, 78, 79
sMa, sMb, sMM, sMP = 80, 82, 84, 86
sT2 = 23
sLtot = 2
sC2 = 4
sNLc = 6
sLow = 8
sOB = 10
sPrioN = 11
sRB = 7

_stamp = [0]


def ustamp(a):
    if OPT.get('stamps') != 2:
        return
    a('s_memtime s[100:101]')
    for i in range(11):
        a(f's_mov_b32 s{88 + i}, s{89 + i}')
    a('s_waitcnt lgkmcnt(0)')
    a('s_mov_b32 s99, s100')


def stamp(a):
    if OPT.get('stamps') != 1:
        return
    i = _stamp[0]
    _stamp[0] += 1
    assert i < 12
    a('s_memtime s[100:101]')
    a('s_waitcnt lgkmcnt(0)')
    a(f's_mov_b32 s{88 + i}, s100')


def slots_fast():
    out = []
    rk = list(range(56, 64)) + list(range(240, 244))
    for q in range(12):
        k, h = divmod(q, 2)
        out.append(dict(R=32 + 4 * k + 2 * h, rank=rk[q], ad=244 + q, thr=4 * k + h))
    return out


def slots_slow():
    return [dict(R=128 + 2 * h, rank=132 + h, ad=134 + h, thr=h) for h in range(2)]


def slot_loop(a, slots, label, body):
    for i, q in enumerate(slots):
        a(f'v_cmpx_lt_i32 vcc, {q["thr"]}, v{vRem}')
        if i % 2 == 0 and i >= 4:
            a(f's_cbranch_execz {label}')
        body(q)
    a(f'{label}:')
    a('s_mov_b64 exec, -1')


def hist(a, slots, tag):
    a(f'v_mov_b32 v{vT}, 1')

    def body(q):
        a(f'v_and_b32 v{q["ad"]}, 0x3f8, v{q["R"] + 1}')
        a(f'ds_add_rtn_u32 v{q["rank"]}, v{q["ad"]}, v{vT} offset:{HIST}')
    slot_loop(a, slots, f'H_{tag}', body)


def scatter1(a, slots, tag):
    slot_loop(a, slots, f'SC1_{tag}', lambda q: a(f'ds_read_b32 v{q["ad"]}, v{q["ad"]} offset:{HIST + 4}'))


def scatter2(a, slots, tag):
    def body(q):
        a(f'v_add_lshl_u32 v{q["ad"]}, v{q["ad"]}, v{q["rank"]}, 3')
        a(f'ds_write_b64 v{q["ad"]}, {v(q["R"], 2)}')
    slot_loop(a, slots, f'SC2_{tag}', body)


def woff(j, k):
    return j * 16384 + (k >> 2) * 8192 + (k & 3) * 1024


def z0_reads(a):
    for k in range(8):
        for j in range(2):
            a(f'ds_read_b128 {v(64 + (j * 8 + k) * 4, 4)}, v{vWf} offset:{4096 + woff(j, k)}')
        if k == 3:
            a('s_waitcnt lgkmcnt(6)')


def z0_gemm(a):
    for k in range(8):
        for j in range(2):
            mfma(a, Z0 + 16 * j, 160 + 4 * k, 64 + (j * 8 + k) * 4, None if k == 0 else Z0 + 16 * j)


def scale32(a, base):
    for i in range(16):
        a(f'v_pk_mul_f32 {v(base + 2 * i, 2)}, {v(base + 2 * i, 2)}, {s(sC2, 2)}')


def end_loads(a):
    a(f'v_lshrrev_b32 v{T0}, 7, v{vLin}')
    a(f'v_and_b32 v{T1}, 0x70, v{vLin}')
    a(f'v_lshl_or_b32 v{vO}, v{T0}, 8, v{T1}')
    a(f's_lshl_b32 s{sT}, s{sW}, 12')
    a(f's_add_u32 s{sT}, s{sT}, 65536')
    a('s_waitcnt vmcnt(0) lgkmcnt(0)')
    for m in range(4):
        a(f's_add_u32 m0, s{sRing}, {m * 1024}')
        a(f's_add_u32 s{sT2}, s{sT}, {m * 1024}')
        a(f'buffer_load_dwordx4 v{vLin}, {s(sWF, 4)}, s{sT2} offen lds')
    for m in range(4):
        a(f's_add_u32 m0, s{sRing}, {4096 + m * 1024}')
        a(f's_add_u32 s{sT2}, s{sOB}, {m * 2048}')
        a(f'buffer_load_dwordx4 v{vO}, {s(sH, 4)}, s{sT2} offen lds')


def set_flag(a):
    a(f's_lshl_b32 s{sT}, s{sW}, 2')
    a('s_mov_b64 exec, 1')
    a(f'v_mov_b32 v{T0}, s{sT}')
    a(f'v_mov_b32 v{T1}, s{sFlagV}')
    a(f'ds_write_b32 v{T0}, v{T1} offset:{FLAGS}')
    a('s_mov_b64 exec, -1')


def bp_load(a, sreg):
    a(f'v_subrev_u32 v{T0}, s{sreg}, v{vBPslot}')
    a(f'v_and_b32 v{T0}, 7, v{T0}')
    a(f'v_add_u32 v{T0}, s{sreg}, v{T0}')
    a(f'v_lshl_add_u32 v{T0}, v{T0}, 8, v{vBPc}')
    for b in range(4):
        a(f'ds_read_b64_tr_b16 {v(BP + 4 * b, 2)}, v{T0} offset:{64 * b}')


def dma_pair(bb):
    return [f's_add_u32 m0, s{sRing}, {bb * 2048 - 64 * bb}',
            f'buffer_load_dwordx4 v{vDA0}, {s(sQ, 4)}, 0 offen offset:{64 * bb} lds',
            f's_add_u32 m0, s{sRing}, {bb * 2048 + 1024 - 64 * bb}',
            f'buffer_load_dwordx4 v{vDA1}, {s(sQ, 4)}, 0 offen offset:{64 * bb} lds']


def mf(d, A, B, C=None):
    c = '0' if C is None else v(C, 16)
    return f'v_mfma_f32_32x32x16_bf16 {v(d, 16)}, {v(A, 4)}, {v(B, 4)}, {c}'


def s_stage(b, first):
    acc = ACC + 16 * b
    return [mf(acc, M, SEG, None if first else acc), mf(acc, M + 4, SEG + 4, acc)]


def s_build():
    return [[f's_and_b64 exec, {s(sNul, 2)}, {s(sLow, 2)}',
             f'ds_write_b64 v{vSA}, {v(SV, 2)}',
             's_mov_b64 exec, -1'],
            [f'ds_read_b64_tr_b16 {v(SEG, 2)}, v{vStrE}'],
            [f'ds_read_b64_tr_b16 {v(SEG + 2, 2)}, v{vStrO} offset:512'],
            [f'ds_read_b64_tr_b16 {v(SEG + 4, 2)}, v{vStrE} offset:1024'],
            [f'ds_read_b64_tr_b16 {v(SEG + 6, 2)}, v{vStrO} offset:1536'],
            [f's_and_b64 exec, {s(sNul, 2)}, {s(sLow, 2)}',
             f'ds_write_b64 v{vSA}, {v(SEL + 2, 2)}',
             's_mov_b64 exec, -1']]


def rec_prep(R):
    X = R + 1
    return [[f'v_and_or_b32 v{vT}, v{X}, 56, v{vLUTc}',
             f'v_and_b32 v{T0}, 0x3f8, v{X}'],
            [f'ds_read_b64 {v(AP, 2)}, v{vT} offset:{LUT}'],
            [f'ds_read2_b64 {v(T0, 4)}, v{T0} offset0:0 offset1:{NB}'],
            [f'v_bitop3_b32 v{vSA}, v{X}, 56, v{vSc} bitop3:0x6a',
             f'v_cmp_gt_u32 {s(sNul, 2)}, s{sNullC}, v{X}'],
            [f'v_readlane_b32 s{sNFn}, v{X}, 0',
             f'v_readlane_b32 s{sNLn}, v{X}, 31']]


def geometry(R, P):
    return [f'v_sub_f32 v{T0}, v{T0}, v{P}',
            f'v_sub_f32 v{T1}, v{T1}, v{P + 1}',
            f'v_sub_f32 v{T2}, v{T2}, v{P + 2}',
            f'v_mul_f32 v{T3}, v{T0}, v{T0}',
            f'v_cvt_pk_bf16_f32 v{SV}, v{T0}, v{T1}',
            f'v_fmac_f32 v{T3}, v{T1}, v{T1}',
            f'v_cvt_pk_bf16_f32 v{SV + 1}, v{T2}, 1.0',
            f'v_fmac_f32 v{T3}, v{T2}, v{T2}',
            f'v_cvt_pk_bf16_f32 v{AP + 2}, v{T3}, v{R}']


def step(a, b, first, has_s, tag):
    Dc, Dn = D[b & 1], D[(b + 1) & 1]
    bn = (b + 1) % 4
    a.c(f'---- step {b} {tag}')
    a('s_waitcnt lgkmcnt(0)')
    if b == 3:
        a(f'v_lshrrev_b32 v{vT}, 12, v{RN + 1}')
        a(f's_cmp_ge_u32 s{sNU}, 3')
        a(f's_cselect_b32 s{sQ + 2}, {N * 256}, 0')
        a(f's_cselect_b32 s{sPOSF + 2}, {N * 16}, 0')
        a(f'v_mad_u32_u16 v{vDA0}, v{vDA0}, s{s256}, v{vDMAc} op_sel:[1,0,0,0]')
        a(f'v_mad_u32_u16 v{vDA1}, v{vDA1}, s{s256}, v{vDMAc} op_sel:[1,0,0,0]')
    ex = [[] for _ in range(16)]
    d = dma_pair(bn)
    ex[0].append(mf(Dn, AP, BP + 4 * bn))
    if b == 3:
        ex[1].append(f'buffer_load_dwordx3 {v(PS, 3)}, v{vT}, {s(sPOSF, 4)}, 0 offen')
    ex[1].append(d[0])
    ex[2].append(d[1])
    ex[3].append(d[2])
    ex[4].append(mf(Dn, AQ, I0, Dn))
    ex[5].append(d[3])
    ex[8].append(mf(Dn, AQ + 4, I1, Dn))
    if b == 2:
        rp = rec_prep(RN)
        ex[6] += rp[0]
        ex[7] += rp[1] + rp[2]
        ex[9] += [f'ds_read2_b32 {v(vDA0, 2)}, v{vX2A} offset0:0 offset1:32'] + rp[3]
        ex[10] += rp[4]
        ex[12] += [f's_bfe_u32 s{sNFn}, s{sNFn}, 0x70003',
                   f's_bfe_u32 s{sNLn}, s{sNLn}, 0x70003']
        ex[13] += [f's_sub_u32 s{sT}, s{sNLn}, s{sNB}',
                   f's_min_u32 s{sNBn}, s{sNFn}, {NB - 8}']
        ex[14] += [f's_cmp_ge_u32 s{sT}, 8',
                   f's_cselect_b32 s{sNew}, 1, 0']
        ex[15] += [f's_cmp_ge_u32 s{sNU}, 2',
                   f's_cselect_b32 s{sNew}, s{sNew}, 0']
    if b == 0 and has_s:
        ex[9] += [f's_mov_b32 s{sNLW}, s{sNLc}',
                  f's_mov_b32 s{sNLc}, s{sNLn}']
        ex[10] += [f's_sub_u32 s{sNU}, s{sNU}, 1']
    for i in range(16):
        for x in ex[i]:
            a(x)
        a(f'v_exp_f32 v{EE + i}, v{Dc + i}')
    for i in range(8):
        a(f'v_pk_add_f32 {v(EE + 2 * i, 2)}, {v(EE + 2 * i, 2)}, 1.0 op_sel_hi:[1,0]')
    rx = [[] for _ in range(17)]
    if has_s:
        ss = s_stage((b - 1) % 4, first)
        rx[0].append(ss[0])
        rx[4].append(ss[1])
    if b == 2:
        g = geometry(RN, PS)
        rx[1] += ['s_waitcnt lgkmcnt(0)'] + g[0:3]
        rx[2] += g[3:6]
        rx[3] += g[6:9]
        rx[7] += [f'ds_read_b64 {v(RN, 2)}, v{vRecA}',
                  f'v_add_u32 v{vRecA}, 0x100, v{vRecA}',
                  f'v_add_u32 v{vX2A}, 0x100, v{vX2A}']
    b2 = (b + 2) % 4
    vm = 7 if (b == 3 or (b == 0 and has_s)) else 6
    rx[5] += [f's_waitcnt vmcnt({vm})', f'ds_read_b128 {v(AQ, 4)}, v{vAQ0} offset:{b2 * 2048}']
    rx[6] += [f'ds_read_b128 {v(AQ + 4, 4)}, v{vAQ1} offset:{b2 * 2048}']
    if b == 0:
        for i, x in enumerate(s_build()):
            rx[8 + i] += x
    for i in range(16):
        for x in rx[i]:
            a(x)
        if b == 2 and i == 8:
            a(f's_cmp_eq_u32 s{sNew}, 0')
            a(f's_cbranch_scc1 NOBP_{tag}')
            bp_load(a, sNBn)
            a(f'NOBP_{tag}:')
        a(f'v_rcp_f32 v{EE + i}, v{EE + i}')
    for i in range(8):
        a(f'v_pk_mul_f32 {v(EE + 2 * i, 2)}, {v(EE + 2 * i, 2)}, {v(Dc + 2 * i, 2)}')
    for i in range(8):
        a(f'v_cvt_pk_bf16_f32 v{M + i}, v{EE + 2 * i}, v{EE + 2 * i + 1}')


def flush(a):
    a.c('---- flush window')
    a(f's_add_u32 s{sT2}, s{sNB}, {MIR}')
    a(f'v_subrev_u32 v{T0}, s{sNB}, v{vBPslot}')
    a(f'v_subrev_u32 v{T1}, s{sNB}, v{vFslot}')
    a(f'v_and_b32 v{T0}, 7, v{T0}')
    a(f'v_and_b32 v{T1}, 7, v{T1}')
    a(f'v_add_u32 v{T0}, s{sT2}, v{T0}')
    a(f'v_add_u32 v{T1}, s{sT2}, v{T1}')
    a(f'v_mad_u32_u24 v{T0}, v{T0}, s{s272}, v{vOldc}')
    a('s_waitcnt lgkmcnt(0)')
    for b in range(4):
        a(f'ds_read_b64_tr_b16 {v(OLD + 2 * b, 2)}, v{T0} offset:{64 * b}')
    for k in range(4):
        a(f'ds_read_b128 {v(EE + 4 * k, 4)}, v{vWx} offset:{WXT + 32 * k}')
    a(f's_add_u32 s{sT2}, s{sNFW}, {MIR}')
    a(f'v_mad_u32_u24 v{T3}, v{T1}, s{s272}, v{vFp}')
    a(f'v_subrev_u32 v{T2}, s{sT2}, v{T1}')
    a(f'ds_read_b32 v{vT}, v{T3}')
    a(f's_sub_u32 s{sT}, s{sNLW}, s{sNFW}')
    a(f'v_cmp_ge_u32 vcc, s{sT}, v{T2}')
    a(f'v_mad_u32_u24 v{T1}, v{T1}, s{s272}, v{vWx}')
    a(f's_and_b64 {s(sMa, 2)}, vcc, {s(sMM, 2)}')
    a(f's_and_b64 {s(sMb, 2)}, vcc, {s(sMP, 2)}')
    a('s_waitcnt lgkmcnt(5)')
    for b in range(4):
        a(mf(ACC + 16 * b, OLD + 2 * b, SEL, ACC + 16 * b))
    a(f's_mov_b32 s{sNB}, s{sNBn}')
    a(f's_mov_b32 s{sNFW}, s{sNFn}')
    a('s_waitcnt lgkmcnt(0)')
    for b in range(4):
        acc = ACC + 16 * b
        for j in range(8):
            a(f'v_cvt_pk_bf16_f32 v{acc + j}, v{acc + 2 * j}, v{acc + 2 * j + 1}')
            if j == 5:
                k = 2 * b
                a(mf(D[0], (EE + 4 * k) if k < 4 else (WXH + 4 * (k - 4)), acc, None if k == 0 else D[0]))
            if j == 1 and b > 0:
                k = 2 * b - 1
                a(mf(D[0], (EE + 4 * k) if k < 4 else (WXH + 4 * (k - 4)), acc - 16 + 4, D[0]))
    a(f's_mov_b64 exec, {s(sMa, 2)}')
    a(f'ds_write_b128 v{T1}, {v(ACC, 4)}')
    a('s_mov_b64 exec, -1')
    a(mf(D[0], WXH + 12, ACC + 48 + 4, D[0]))
    a(f's_mov_b64 exec, {s(sMa, 2)}')
    for k in range(1, 8):
        a(f'ds_write_b128 v{T1}, {v(ACC + 16 * (k // 2) + 4 * (k % 2), 4)} offset:{32 * k}')
    a(f's_mov_b64 exec, {s(sMb, 2)}')
    a(f'v_add_f32 v{vT}, v{vT}, v{D[0]}')
    a(f'ds_write_b32 v{T3}, v{vT}')
    set_flag(a)


def table_load(a):
    srd(a, sTT, 24, WS_TAB, NCH * 1024)
    a(f'v_lshrrev_b32 v{T1}, 1, v0')
    a(f'v_lshlrev_b32 v{T2}, 10, v{T1}')
    a(f's_lshl_b32 s{sT}, s{sBin}, 2')
    a(f'buffer_load_dword v{vTab}, v{T2}, {s(sTT, 4)}, s{sT} offen')


def gen_k2(a):
    _stamp[0] = 0
    a('k2_kernel:')
    a('s_cmp_ge_u32 s2, 256')
    a('s_cbranch_scc1 K2_END')
    if OPT.get('stamps'):
        a('s_memrealtime s[100:101]')
        a('s_waitcnt lgkmcnt(0)')
        a(f's_mov_b32 s{sBatch}, s100')
    a('s_load_dwordx2 s[24:25], s[0:1], 80')
    a('s_load_dwordx2 s[4:5], s[0:1], 0')
    a('s_load_dwordx2 s[20:21], s[0:1], 64')
    a(f'v_lshrrev_b32 v{T0}, 6, v0')
    a(f'v_and_b32 v{vLANE}, 63, v0')
    a(f'v_readfirstlane_b32 s{sW}, v{T0}')
    a(f's_and_b32 s{sBin}, s2, 7')
    a(f's_lshl_b32 s{sBin}, s{sBin}, 5')
    a(f's_lshr_b32 s{sT}, s2, 3')
    a(f's_add_u32 s{sBin}, s{sBin}, s{sT}')
    a(f's_mul_i32 s{sN0}, s{sBin}, {NB}')
    a(f's_sub_u32 s{sNV}, {N}, s{sN0}')
    a(f's_min_u32 s{sNV}, s{sNV}, {NB}')
    a(f'v_lshrrev_b32 v24, 4, v{vLANE}')
    a(f's_and_b32 s{sT2}, s{sW}, 3')
    a(f's_lshl_b32 s{sT2}, s{sT2}, 2')
    a(f'v_add_u32 v25, s{sT2}, v24')
    a(f'v_and_b32 v26, 15, v{vLANE}')
    a('v_xor_b32 v25, v25, v26')
    a('v_lshlrev_b32 v25, 4, v25')
    a(f'v_lshl_or_b32 v{T3}, v24, 8, v25')
    a(f'v_lshlrev_b32 v{vLin}, 4, v{vLANE}')
    a(f's_lshl_b32 s{sRing}, s{sW}, 13')
    a(f's_add_u32 s{sRing}, s{sRing}, {RING}')
    for i in range(4):
        a(f'v_mov_b32 v{28 + i}, 0')
    a('v_lshlrev_b32 v24, 4, v0')
    a(f'v_add_u32 v25, {MI}, v24')
    a('s_waitcnt lgkmcnt(0)')
    stamp(a)
    table_load(a)
    a(f's_lshl_b32 s{sT}, s{sN0}, 8')
    a(f's_lshl_b32 s{sT2}, s{sNV}, 8')
    srd(a, sH, 4, f's{sT}', f's{sT2}')
    srd(a, sOUT, 20, f's{sT}', f's{sT2}')
    a(f's_lshl_b32 s{sT}, s{sW}, 10')
    for m in range(3):
        a(f's_add_u32 m0, s{sT}, {SH + m * 8192}')
        a(f's_add_u32 s{sT2}, s{sT}, {m * 8192}')
        a(f'buffer_load_dwordx4 v{T3}, {s(sH, 4)}, s{sT2} offen lds')
    srd(a, sWF, 24, WS_WF, WF_SIZE)
    a(f's_lshl_b32 s{sT}, s{sW}, 12')
    for m in range(4):
        a(f's_add_u32 m0, s{sRing}, {m * 1024}')
        a(f's_add_u32 s{sT2}, s{sT}, {m * 1024}')
        a(f'buffer_load_dwordx4 v{vLin}, {s(sWF, 4)}, s{sT2} offen lds')
    a(f's_cmp_lg_u32 s{sW}, 0')
    a('s_cbranch_scc1 X1')
    a(f's_mov_b32 m0, {SH + 24576}')
    a(f's_movk_i32 s{sT2}, 24576')
    a(f'buffer_load_dwordx4 v{T3}, {s(sH, 4)}, s{sT2} offen lds')
    a('X1:')
    for i in range(3):
        a(f'ds_write_b128 v25, v[28:31] offset:{i * 8192}')
    a(f'v_cmpx_gt_u32 vcc, {(NB * MIS - 3 * 8192) // 16}, v0')
    a(f'ds_write_b128 v25, v[28:31] offset:{3 * 8192}')
    a(f'v_cmpx_gt_u32 vcc, {(LUT - HIST) // 16}, v0')
    a(f'ds_write_b128 v24, v[28:31] offset:{HIST}')
    a('s_mov_b64 exec, -1')
    srd(a, sREC, 24, WS_REC, NCH * CH * 8)
    srd(a, sQ, 24, 0, N * 256)
    a(f's_mul_i32 s{sT}, s{sN0}, 6')
    a(f's_add_u32 s{sT}, s{sT}, {N * 256}')
    srd(a, sOUTP, 20, f's{sT}', 1024)
    a(f's_lshl_b32 s{sT}, s{sN0}, 4')
    a(f's_add_u32 s{sT}, s{sT}, {WS_POSF}')
    a(f's_lshl_b32 s{sT2}, s{sNV}, 4')
    srd(a, sPOSF, 24, f's{sT}', f's{sT2}')
    a(f's_movk_i32 s{s256}, 256')
    a(f's_movk_i32 s{s272}, {MIS}')
    a(f's_mov_b32 s{sFlagV}, 1')
    a(f's_mov_b32 s{sNullC}, 0x7f000000')
    a(f's_mov_b32 s{sC2}, {NL2E:#x}')
    a(f's_mov_b32 s{sC2 + 1}, {NL2E:#x}')
    a(f's_mov_b32 s{sMM}, 0x88888888')
    a(f's_mov_b32 s{sMM + 1}, 0x88888888')
    a(f's_mov_b32 s{sMP}, 0x77777777')
    a(f's_mov_b32 s{sMP + 1}, 0')
    a(f's_cmp_lt_u32 s{sW}, 4')
    a(f's_cselect_b32 s{sPrioN}, {OPT.get("prio", 2)}, 0')
    a(f's_mov_b32 s{sLow}, -1')
    a(f's_mov_b32 s{sLow + 1}, 0')
    e, hh = 26, 27
    a(f'v_and_b32 v{e}, 31, v{vLANE}')
    a(f'v_lshrrev_b32 v{hh}, 5, v{vLANE}')
    a(f'v_lshlrev_b32 v24, 3, v{hh}')
    a(f'v_sub_u32 v24, v{e}, v24')
    a('v_and_b32 v25, 1, v24')
    a('v_lshlrev_b32 v25, 4, v25')
    a('v_mov_b32 v28, 0x3f80')
    a('v_lshlrev_b32 v25, v25, v28')
    a('v_ashrrev_i32 v24, 1, v24')
    for rho in range(4):
        a(f'v_cmp_eq_u32 vcc, {rho}, v24')
        a(f'v_cmp_eq_u32 s[{sMa}:{sMa + 1}], {8 + rho}, v24')
        a(f'v_mov_b32 v{BP + 4 * rho + 3}, 0')
        a(f'v_cndmask_b32 v{I0 + rho}, 0, v25, vcc')
        a(f'v_cndmask_b32 v{I1 + rho}, 0, v25, s[{sMa}:{sMa + 1}]')
    a(f'v_lshrrev_b32 v{vFslot}, 2, v{e}')
    a(f'v_lshlrev_b32 v24, 2, v{hh}')
    a(f'v_sub_u32 v24, v{vFslot}, v24')
    a('v_lshlrev_b32 v25, 4, v24')
    a('v_lshlrev_b64 v[28:29], v25, v[28:29]')
    a('v_cmp_gt_u32 vcc, 4, v24')
    a(f'v_mov_b32 v{SEL + 2}, 0')
    a(f'v_mov_b32 v{SEL + 3}, 0')
    a(f'v_mov_b32 v{AP + 3}, 0')
    a(f'v_cndmask_b32 v28, 0, v28, vcc')
    a(f'v_cndmask_b32 v29, 0, v29, vcc')
    a(f'v_cndmask_b32 v{SEL}, 0, v28, {s(sMM, 2)}')
    a(f'v_cndmask_b32 v{SEL + 1}, 0, v29, {s(sMM, 2)}')
    a(f'v_lshlrev_b32 v{vLUTc}, 6, v{hh}')
    a(f'v_lshl_add_u32 v24, v{vFslot}, 3, v{vLUTc}')
    a(f's_mov_b64 exec, {s(sMM, 2)}')
    a(f'ds_write_b64 v24, v[28:29] offset:{LUT}')
    a('s_mov_b64 exec, -1')
    a(f's_lshr_b32 s{sT}, s{sW}, 1')
    a(f's_mul_i32 s{sRB}, s{sT}, 24')
    a(f's_cmp_eq_u32 s{sT}, 0')
    a(f's_cselect_b32 s{sT}, 0, 8')
    a(f's_add_u32 s{sRB}, s{sRB}, s{sT}')
    a(f's_lshl_b32 s{sT}, s{sRB}, 8')
    a(f's_and_b32 s{sT2}, s{sW}, 1')
    a(f's_lshl_b32 s{sT2}, s{sT2}, 7')
    a(f's_add_u32 s{sOB}, s{sT2}, s{sT}')
    a(f'v_lshlrev_b32 v25, 10, v{hh}')
    a(f'v_lshl_or_b32 v25, v{e}, 2, v25')
    a(f'v_add_u32 v{vO}, s{sOB}, v25')
    a(f'v_add_u32 v24, s{sRB}, v{e}')
    a('v_and_b32 v25, 15, v24')
    a(f'v_xor_b32 v25, v25, v{hh}')
    a('v_lshlrev_b32 v25, 4, v25')
    a('v_lshl_or_b32 v25, v24, 8, v25')
    a(f'v_add_u32 v{OLD}, {SH}, v25')
    for k in range(1, 8):
        a(f'v_xor_b32 v{OLD + k}, {k << 5}, v{OLD}')
    a(f's_and_b32 s{sT2}, s{sW}, 1')
    a(f's_lshl_b32 s{sT2}, s{sT2}, 15')
    a(f's_add_u32 s{sT2}, s{sT2}, {RING}')
    a(f'v_add_u32 v{vWf}, s{sT2}, v{vLin}')
    a(f's_movk_i32 s{sT}, {CH}')
    a(f'v_mul_u32_u24 v{T1}, s{sT}, v{T1}')
    a('v_and_b32 v24, 1, v0')
    a('v_lshlrev_b32 v24, 1, v24')
    a('s_waitcnt vmcnt(7)')
    stamp(a)
    a(f'v_lshrrev_b32 v25, 16, v{vTab}')
    a(f'v_sub_u32 v{vRem}, v25, v24')
    a(f'v_and_b32 v25, 0xffff, v{vTab}')
    a(f'v_add3_u32 v25, v25, v24, v{T1}')
    a('v_lshlrev_b32 v25, 3, v25')
    for k in range(6):
        a(f'v_cmpx_lt_i32 vcc, {4 * k}, v{vRem}')
        a(f's_cbranch_execz RL_{k}')
        a(f'buffer_load_dwordx4 {v(32 + 4 * k, 4)}, v25, {s(sREC, 4)}, 0 offen offset:{32 * k}')
    for k in range(6, -1, -1):
        a(f'RL_{k}:')
        a(f's_waitcnt vmcnt({k}) lgkmcnt(0)')
        if k:
            a('s_branch RL_DONE')
    a('RL_DONE:')
    a('s_mov_b64 exec, -1')
    a('s_barrier')
    stamp(a)

    def preads(k):
        a(f'ds_read_b128 {v(160 + 4 * k, 4)}, v{OLD + k}')
        a(f'ds_read_b128 {v(64 + 4 * k, 4)}, v{vWf} offset:{woff(0, k)}')
        a(f'ds_read_b128 {v(96 + 4 * k, 4)}, v{vWf} offset:{woff(1, k)}')

    def pmf(k):
        mfma(a, 128, 160 + 4 * k, 64 + 4 * k, None if k == 0 else 128)
        mfma(a, 144, 160 + 4 * k, 96 + 4 * k, None if k == 0 else 144)
    cl = []
    c = cl.append
    c(f'v_bfe_u32 v24, v{e}, 2, 2')
    c(f'v_xor_b32 v24, v24, v{hh}')
    c('v_lshlrev_b32 v24, 4, v24')
    c(f'v_lshl_or_b32 v24, v{e}, 6, v24')
    c(f'v_add_u32 v{vAQ0}, s{sRing}, v24')
    c(f'v_xor_b32 v{vAQ1}, 32, v{vAQ0}')
    c(f'v_and_b32 v24, 3, v{vLANE}')
    c(f'v_lshrrev_b32 v25, 4, v{vLANE}')
    c('v_xor_b32 v25, v24, v25')
    c(f'v_lshlrev_b32 v{vDMAc}, 4, v25')
    c(f's_lshl_b32 s{sU0}, s{sW}, 11')
    c(f's_add_u32 s{sU0}, s{sU0}, {SH}')
    c(f'v_bfe_u32 v25, v{e}, 1, 3')
    c('v_lshlrev_b32 v25, 3, v25')
    c(f'v_lshl_or_b32 v25, v{e}, 6, v25')
    c(f'v_add_u32 v{vSc}, s{sU0}, v25')
    r_, g1, tt = T0, T1, T2
    c(f'v_bfe_u32 v{r_}, v{vLANE}, 2, 2')
    c(f'v_bfe_u32 v{g1}, v{vLANE}, 4, 1')
    c(f'v_lshl_add_u32 v{vBPslot}, v{hh}, 2, v{r_}')
    c(f'v_lshl_or_b32 v25, v{g1}, 2, v24')
    c(f'v_lshrrev_b32 v{tt}, 1, v{vBPslot}')
    c(f'v_xor_b32 v25, v25, v{tt}')
    c('v_lshlrev_b32 v25, 3, v25')
    c(f'v_lshl_or_b32 v25, v{vBPslot}, 6, v25')
    c(f'v_add_u32 v{vStrE}, s{sU0}, v25')
    c(f'v_xor_b32 v{vStrO}, 32, v{vStrE}')
    c(f'v_lshlrev_b32 v25, 5, v{g1}')
    c(f'v_lshl_or_b32 v{tt}, v24, 3, v25')
    c(f'v_add_u32 v{vBPc}, {PT}, v{tt}')
    c(f'v_and_b32 v{tt}, 1, v24')
    c(f'v_lshl_or_b32 v25, v{tt}, 4, v25')
    c(f'v_lshrrev_b32 v{tt}, 1, v24')
    c(f'v_lshl_or_b32 v{vOldc}, v{tt}, 3, v25')
    c(f'v_lshlrev_b32 v{vWx}, 4, v{hh}')
    c(f'v_lshl_add_u32 v{vFp}, v24, 2, s{s256}')
    for k in range(4):
        preads(k)
    a(f's_lshl_b32 s{sT}, s{sW}, 12')
    per = -(-len(cl) // 8)
    for k in range(8):
        if k < 4:
            a(f's_waitcnt lgkmcnt(9)')
        else:
            a(f's_waitcnt lgkmcnt({3 * (7 - k)})')
        pmf(k)
        if k < 4:
            preads(k + 4)
            a(f's_add_u32 m0, s{sRing}, {4096 + k * 1024}')
            a(f's_add_u32 s{sT2}, s{sT}, {32768 + k * 1024}')
            a(f'buffer_load_dwordx4 v{vLin}, {s(sWF, 4)}, s{sT2} offen lds')
        if k == 4:
            a(f's_mov_b32 s{sT2}, {WF_CST}')
            a(f'buffer_load_dwordx4 v[28:31], v{vLin}, {s(sWF, 4)}, s{sT2} offen')
        for x in cl[k * per:(k + 1) * per]:
            a(x)
    a(f's_cmp_lg_u32 s{sW}, 6')
    a('s_cbranch_scc1 X4')
    a(f's_mov_b32 m0, {WXT}')
    a(f's_mov_b32 s{sT2}, {WF_WX}')
    a('s_mov_b64 exec, 0xffff')
    a(f'buffer_load_dwordx4 v{vLin}, {s(sWF, 4)}, s{sT2} offen lds')
    a('s_mov_b64 exec, -1')
    a('X4:')
    a(f's_cmp_gt_u32 s{sW}, 1')
    a('s_cbranch_scc1 X2')
    a('v_lshlrev_b32 v24, 4, v0')
    a(f'buffer_load_dwordx4 {v(T0, 4)}, v24, {s(sPOSF, 4)}, 0 offen')
    a('X2:')
    srd(a, sPOSF, 24, WS_POSF, N * 16)
    a(f'v_lshrrev_b32 v25, 16, v{vTab}')
    a('v_cmp_lt_u32 vcc, 24, v25')
    a('s_cmp_eq_u64 vcc, 0')
    a('s_cbranch_scc1 NOLONG')
    a('v_mov_b32 v24, 0')
    a('v_mov_b32 v25, 1')
    a(f'ds_write_b32 v24, v25 offset:{LONGF}')
    a('NOLONG:')
    a('s_waitcnt vmcnt(5)')
    stamp(a)
    hist(a, slots_fast(), 'F')
    a(f'v_add_u32 v24, {PT}, v{vO}')
    for g in range(4):
        if g == 2:
            a(f's_cmp_ge_u32 s{sW}, 6')
            a('s_cselect_b32 exec_hi, 0, -1')
        if g == 3:
            a(f's_cmp_ge_u32 s{sW}, 2')
            a('s_cbranch_scc1 PWD')
        for h in range(2):
            i = 4 * g + 2 * h
            a(f'v_pk_mul_f32 {v(128 + i, 2)}, {v(128 + i, 2)}, {s(sC2, 2)}')
            a(f'v_pk_mul_f32 {v(144 + i, 2)}, {v(144 + i, 2)}, {s(sC2, 2)}')
            a(f'v_cvt_pk_bf16_f32 v{128 + i}, v{128 + i}, v{144 + i}')
            a(f'v_cvt_pk_bf16_f32 v{129 + i}, v{129 + i}, v{145 + i}')
            a(f'ds_write2st64_b32 v24, v{128 + i}, v{129 + i} offset0:{8 * g + 2 * h} offset1:{8 * g + 2 * h + 1}')
            if g == 2 and h == 0:
                a('s_cbranch_scc1 PWD')
    a('PWD:')
    a('s_mov_b64 exec, -1')
    a('s_waitcnt vmcnt(0)')
    for b in range(4):
        a(f'v_mov_b32 v{BP + 4 * b + 2}, v{28 + b}')
    a(f'v_cmpx_gt_u32 vcc, {NB}, v0')
    a('s_cbranch_execz X3')
    a('v_lshlrev_b32 v24, 3, v0')
    a(f'ds_write2_b64 v24, {v(T0, 2)}, {v(T2, 2)} offset0:0 offset1:{NB}')
    a('X3:')
    a('s_mov_b64 exec, -1')
    a('s_waitcnt lgkmcnt(0)')
    a('s_barrier')
    stamp(a)
    c0, c1, sm, inc, lf = 24, 26, 25, 27, 28
    b0, b1, nb0 = 29, 30, T0
    a(f'ds_read_b128 v[24:27], v{vLin} offset:{HIST}')
    a(f'v_mov_b32 v{lf}, 0')
    a(f'ds_read_b32 v{lf}, v{lf} offset:{LONGF}')

    def zr(k):
        for j in range(2):
            a(f'ds_read_b128 {v(64 + (j * 8 + k) * 4, 4)}, v{vWf} offset:{4096 + woff(j, k)}')
    for k in range(2):
        zr(k)
    a('s_waitcnt lgkmcnt(4)')
    a(f'v_add_u32 v{sm}, v{c0}, v{c1}')
    a(f'v_mov_b32 v{inc}, v{sm}')
    a(f'v_readfirstlane_b32 s{sSlow}, v{lf}')
    scan64(a, inc)
    a(f'v_sub_u32 v{b0}, v{inc}, v{sm}')
    a(f'v_add_u32 v{b1}, v{b0}, v{c0}')
    a(f'v_add_u32 v{T2}, {REC // 8}, v{b0}')
    a(f'v_add_u32 v{T3}, {REC // 8}, v{b1}')
    a(f'v_add_u32 v31, {HIST}, v{vLin}')
    a(f'v_readlane_b32 s{sL}, v{inc}, 63')
    a(f'ds_write2_b32 v31, v{T2}, v{T3} offset0:1 offset1:3')
    a(f'ds_read2_b32 {v(nb0, 2)}, v31 offset0:17 offset1:19')
    scatter1(a, slots_fast(), 'F')
    a(f'v_cmp_lt_u32 vcc, 0, v{c0}')
    a(f'v_cmp_lt_u32 {s(sMa, 2)}, 0, v{c1}')
    a(f's_flbit_i32_b64 s{sT}, vcc')
    a(f's_flbit_i32_b64 s{sT2}, {s(sMa, 2)}')
    a(f's_lshl_b32 s{sT}, s{sT}, 1')
    a(f's_lshl_b32 s{sT2}, s{sT2}, 1')
    a(f's_add_u32 s{sT}, s{sT}, 1')
    a(f's_min_u32 s{sT}, s{sT}, s{sT2}')
    a(f's_sub_u32 s{sNB}, 127, s{sT}')
    a(f's_cmp_gt_u32 s{sL}, {CAP}')
    a(f's_cselect_b32 s{sSlow}, 1, s{sSlow}')
    a('s_waitcnt lgkmcnt(0)')
    a('s_cbranch_scc1 NOSC2')
    scatter2(a, slots_fast(), 'F')
    a('NOSC2:')
    a('s_waitcnt lgkmcnt(3)')
    for k in range(2, 8):
        zr(k)
    a(f'v_subrev_u32 v{nb0}, {REC // 8}, v{nb0}')
    a(f'v_subrev_u32 v{nb0 + 1}, {REC // 8}, v{nb0 + 1}')
    a(f'v_cmp_gt_u32 vcc, s{sL}, v{nb0}')
    a(f'v_cmp_gt_u32 {s(sMa, 2)}, s{sL}, v{nb0 + 1}')
    a(f'v_add_u32 v{b1}, -1, v{b1}')
    a(f'v_add_u32 v{inc}, -1, v{inc}')
    a(f'v_xor_b32 v{b1}, v{b1}, v{nb0}')
    a(f'v_xor_b32 v{inc}, v{inc}, v{nb0 + 1}')
    a(f'v_cmp_gt_u32 {s(sMb, 2)}, 32, v{b1}')
    a(f'v_cmp_gt_u32 {s(sNul, 2)}, 32, v{inc}')
    a(f's_and_b64 vcc, vcc, {s(sMb, 2)}')
    a(f's_and_b64 {s(sMa, 2)}, {s(sMa, 2)}, {s(sNul, 2)}')
    a(f's_or_b64 vcc, vcc, {s(sMa, 2)}')
    a('s_and_b32 vcc_hi, vcc_hi, 0x0fffffff')
    a('s_cmp_lg_u64 vcc, 0')
    a(f's_cselect_b32 s{sSlow}, 1, s{sSlow}')
    if OPT.get('forceslow'):
        a(f's_mov_b32 s{sSlow}, 1')
    a(f's_min_u32 s{sL}, s{sL}, {CAP}')
    a(f's_add_u32 s{sT}, s{sL}, 31')
    a(f's_and_b32 s{sT}, s{sT}, -32')
    a(f'v_add_u32 v24, s{sL}, v{vLANE}')
    a(f's_lshl_b32 s{sT2}, s{sNB}, 3')
    a(f's_or_b32 s{sT2}, s{sT2}, s{sNullC}')
    a(f'v_cmpx_gt_u32 vcc, s{sT}, v24')
    a('v_mov_b32 v26, 0')
    a(f'v_mov_b32 v27, s{sT2}')
    a(f'v_add_u32 v24, {REC // 8}, v24')
    a('v_lshlrev_b32 v24, 3, v24')
    a(f's_mov_b32 s{sL}, s{sT}')
    a('ds_write_b64 v24, v[26:27]')
    a('s_mov_b64 exec, -1')
    a('s_waitcnt lgkmcnt(0)')
    a('s_barrier')
    a(f's_cmp_lg_u32 s{sSlow}, 0')
    a('s_cbranch_scc1 SLOW_ENTRY')
    a('AFTER_B3:')
    stamp(a)
    a(f's_lshr_b32 s{sT}, s{sL}, 5')
    a(f's_lshr_b32 s{sNU}, s{sT}, 3')
    a(f's_and_b32 s{sT}, s{sT}, 7')
    a(f's_mul_i32 s{sU0}, s{sNU}, s{sW}')
    a(f's_min_u32 s{sT2}, s{sW}, s{sT}')
    a(f's_add_u32 s{sU0}, s{sU0}, s{sT2}')
    a(f's_cmp_lt_u32 s{sW}, s{sT}')
    a(f's_addc_u32 s{sNU}, s{sNU}, 0')
    a(f's_cmp_eq_u32 s{sNU}, 0')
    a('s_cbranch_scc1 EMPTY_WAVE')
    TR, TP, TX = 144, 148, 152
    if OPT.get('prio', 2):
        a('s_setprio 1')
        a(f's_cmp_ge_u32 s{sW}, 4')
        a('s_cbranch_scc1 NOPRIO')
        a('s_setprio 2')
        a('NOPRIO:')
    a(f's_lshl_b32 s{sT}, s{sU0}, 8')
    a(f's_add_u32 s{sT}, s{sT}, {REC}')
    a(f'v_and_b32 v24, 31, v{vLANE}')
    a(f'v_lshl_add_u32 v{vRecA}, v24, 3, s{sT}')
    a(f'ds_read_b64 {v(TR, 2)}, v{vRecA}')
    a(f'v_lshrrev_b32 v24, 2, v{vLANE}')
    a('v_lshlrev_b32 v24, 3, v24')
    a(f'v_add3_u32 v{vX2A}, v24, s{sT}, 4')
    a(f'ds_read2_b32 {v(vDA0, 2)}, v{vX2A} offset0:0 offset1:32')
    a(f'ds_read_b64 {v(RN, 2)}, v{vRecA} offset:256')
    a(f'ds_read2_b32 {v(TX, 2)}, v{vX2A} offset0:64 offset1:96')
    a(f's_mov_b32 s{sQ + 2}, {N * 256}')
    a(f's_mov_b32 s{sPOSF + 2}, {N * 16}')
    a(f'v_add_u32 v{vRecA}, 0x200, v{vRecA}')
    a(f'v_add_u32 v{vX2A}, 0x200, v{vX2A}')
    a(f's_cmp_lt_u32 s{sW}, 4')
    a(f's_cselect_b32 s{sT}, 1, s{sSlow}')
    a(f's_cmp_lg_u32 s{sT}, 0')
    a('s_cbranch_scc1 NOZ0A')
    z0_gemm(a)
    a('NOZ0A:')
    a('s_waitcnt lgkmcnt(0)')
    a(f'v_lshrrev_b32 v24, 12, v{TR + 1}')
    a(f'v_mad_u32_u16 v{vDA0}, v{vDA0}, s{s256}, v{vDMAc} op_sel:[1,0,0,0]')
    a(f'v_mad_u32_u16 v{vDA1}, v{vDA1}, s{s256}, v{vDMAc} op_sel:[1,0,0,0]')
    a(f'buffer_load_dwordx3 {v(TP, 3)}, v24, {s(sPOSF, 4)}, 0 offen')
    for bb in range(2):
        for x in dma_pair(bb):
            a(x)
    a(f's_lshl_b32 s{sT}, s{sW}, 11')
    a(f'v_add_u32 v24, s{sT}, v{vLin}')
    for i in range(4):
        a(f'v_mov_b32 v{28 + i}, 0')
    a(f'ds_write_b128 v24, v[28:31] offset:{SH}')
    a(f'ds_write_b128 v24, v[28:31] offset:{SH + 1024}')
    for k in range(4):
        a(f'ds_read_b128 {v(WXH + 4 * k, 4)}, v{vWx} offset:{WXT + 128 + 32 * k}')
    rp = rec_prep(TR)
    for x in rp[4] + rp[3]:
        a(x)
    a(f's_bfe_u32 s{sNFW}, s{sNFn}, 0x70003')
    a(f's_bfe_u32 s{sNLc}, s{sNLn}, 0x70003')
    a(f's_min_u32 s{sNB}, s{sNFW}, {NB - 8}')
    bp_load(a, sNB)
    for x in rp[0] + rp[1] + rp[2]:
        a(x)
    a(f's_cmp_ge_u32 s{sW}, 4')
    a(f's_cselect_b32 s{sT}, 1, s{sSlow}')
    a(f's_cmp_lg_u32 s{sT}, 0')
    a('s_cbranch_scc1 NOZ0B')
    z0_gemm(a)
    a('NOZ0B:')
    stamp(a)
    a(f's_cmp_ge_u32 s{sNU}, 2')
    a(f's_cselect_b32 s{sPOSF + 2}, {N * 16}, 0')
    a(f'v_lshrrev_b32 v24, 12, v{RN + 1}')
    a(f'buffer_load_dwordx3 {v(PS, 3)}, v24, {s(sPOSF, 4)}, 0 offen')
    for bb in range(2, 4):
        for x in dma_pair(bb):
            a(x)
    a(f'v_mad_u32_u16 v{vDA0}, v{TX}, s{s256}, v{vDMAc} op_sel:[1,0,0,0]')
    a(f'v_mad_u32_u16 v{vDA1}, v{TX + 1}, s{s256}, v{vDMAc} op_sel:[1,0,0,0]')
    a(f's_cmp_ge_u32 s{sNU}, 2')
    a(f's_cselect_b32 s{sQ + 2}, {N * 256}, 0')
    a(f's_cmp_lg_u32 s{sSlow}, 0')
    a('s_cbranch_scc1 NOZS')
    scale32(a, Z0)
    a('NOZS:')
    a('s_waitcnt vmcnt(7) lgkmcnt(0)')
    a(f'ds_read_b128 {v(AQ, 4)}, v{vAQ0}')
    a(f'ds_read_b128 {v(AQ + 4, 4)}, v{vAQ1}')
    for x in geometry(TR, TP):
        a(x)
    a('s_waitcnt lgkmcnt(0)')
    a(mf(D[0], AP, BP))
    for x in dma_pair(0):
        a(x)
    a(mf(D[0], AQ, I0, D[0]))
    a(mf(D[0], AQ + 4, I1, D[0]))
    a('s_waitcnt vmcnt(7)')
    a(f'ds_read_b128 {v(AQ, 4)}, v{vAQ0} offset:2048')
    a(f'ds_read_b128 {v(AQ + 4, 4)}, v{vAQ1} offset:2048')
    stamp(a)
    step(a, 0, True, False, 'I')
    a('s_branch BODY_F')
    a('FLUSH:')
    ustamp(a)
    flush(a)
    a(f's_cmp_eq_u32 s{sNU}, 0')
    a('s_cbranch_scc1 WAVE_DONE')
    for tag, first in (('F', True), ('C', False)):
        a(f'BODY_{tag}:')
        ustamp(a)
        for b in (1, 2, 3):
            if OPT.get('prio', 2) and b == OPT.get('pstep', 1):
                a(f's_cmp_gt_u32 s{sNU}, s{sPrioN}')
                a(f's_cbranch_scc1 KP_{tag}')
                a('s_setprio 0')
                a(f'KP_{tag}:')
            step(a, b, first, True, tag)
        a(f's_cmp_eq_u32 s{sNU}, 1')
        a(f's_cbranch_scc1 TAIL_{tag}')
        step(a, 0, first, True, tag)
        a(f's_cmp_lg_u32 s{sNew}, 0')
        a('s_cbranch_scc1 FLUSH')
        if not first:
            a('s_branch BODY_C')
    for tag, first in (('F', True), ('C', False)):
        a(f'TAIL_{tag}:')
        for x in s_stage(3, first):
            a(x)
        if first:
            a('s_branch TAIL')
    a('TAIL:')
    ustamp(a)
    stamp(a)
    a(f's_mov_b32 s{sNLW}, s{sNLc}')
    a(f's_mov_b32 s{sNU}, 0')
    end_loads(a)
    a(f's_cmp_eq_u32 s{sW}, 7')
    a('s_cbranch_scc1 FLUSH')
    a(f's_lshl_b32 s{sT}, s{sW}, 2')
    a(f'v_mov_b32 v{T0}, s{sT}')
    a(f's_mov_b32 s{sT2}, 0x1000000')
    a('SPIN:')
    a(f'ds_read_b32 v{T1}, v{T0} offset:{FLAGS + 4}')
    a('s_waitcnt lgkmcnt(0)')
    a(f'v_readfirstlane_b32 s{sT}, v{T1}')
    a(f's_cmp_eq_u32 s{sT}, s{sFlagV}')
    a('s_cbranch_scc1 FLUSH')
    a(f's_sub_u32 s{sT2}, s{sT2}, 1')
    a('s_cbranch_scc0 SPIN')
    a('s_branch FLUSH')
    a('EMPTY_WAVE:')
    set_flag(a)
    a(f's_cmp_lg_u32 s{sSlow}, 0')
    a('s_cbranch_scc1 EW1')
    z0_gemm(a)
    scale32(a, Z0)
    a('EW1:')
    end_loads(a)
    a('WAVE_DONE:')
    a(f'v_lshrrev_b32 v{vLANE}, 4, v{vLin}')
    a(f's_lshl_b32 s{sT}, s{sW}, 6')
    a(f'v_add_u32 v0, s{sT}, v{vLANE}')
    a('s_waitcnt vmcnt(0) lgkmcnt(0)')
    stamp(a)
    a('s_barrier')
    a(f's_cmp_eq_u32 s{sSlow}, 0')
    a('s_cbranch_scc1 EPI')
    a(f's_add_u32 s{sBatch}, s{sBatch}, 1')
    a(f's_lshl_b32 s{sT}, s{sBatch}, 10')
    a(f's_cmp_lt_u32 s{sT}, s{sLtot}')
    a('s_cbranch_scc1 SLOW_BATCH')
    a('EPI:')
    stamp(a)
    a(f's_add_u32 s{sT}, s{sRB}, {MIR}')
    a(f'v_and_b32 v24, 31, v{vLANE}')
    a(f'v_add_u32 v24, s{sT}, v24')
    a(f'v_mad_u32_u24 v24, v24, s{s272}, v{vWx}')
    a(f's_and_b32 s{sT2}, s{sW}, 1')
    a(f's_lshl_b32 s{sT2}, s{sT2}, 15')
    a(f's_add_u32 s{sT2}, s{sT2}, {RING}')
    a(f'v_add_u32 v25, s{sT2}, v{vLin}')
    for k in range(8):
        a(f'ds_read_b128 {v(160 + 4 * k, 4)}, v24 offset:{k * 32}')
        a(f'ds_read_b128 {v(64 + 4 * k, 4)}, v25 offset:{woff(0, k)}')
        a(f'ds_read_b128 {v(96 + 4 * k, 4)}, v25 offset:{woff(1, k)}')
        if k >= 3:
            kk = k - 3
            a('s_waitcnt lgkmcnt(9)')
            mfma(a, Z0, 160 + 4 * kk, 64 + 4 * kk, Z0)
            mfma(a, Z0 + 16, 160 + 4 * kk, 96 + 4 * kk, Z0 + 16)
    for kk in range(5, 8):
        a(f's_waitcnt lgkmcnt({3 * (7 - kk)})')
        mfma(a, Z0, 160 + 4 * kk, 64 + 4 * kk, Z0)
        mfma(a, Z0 + 16, 160 + 4 * kk, 96 + 4 * kk, Z0 + 16)
    a(f's_mov_b32 s{sC2}, {NLN2:#x}')
    a(f's_mov_b32 s{sC2 + 1}, {NLN2:#x}')
    a(f's_mul_i32 s{sT}, s{sNV}, 3')
    a(f'v_cmpx_gt_u32 vcc, s{sT}, v0')
    a('s_cbranch_execz NOPOS')
    a(f's_movk_i32 s{sT}, 21846')
    a(f'v_mul_u32_u24 v24, s{sT}, v0')
    a('v_lshrrev_b32 v24, 16, v24')
    a('v_mul_u32_u24 v25, 3, v24')
    a('v_sub_u32 v25, v0, v25')
    a('v_lshlrev_b32 v28, 2, v25')
    a(f'v_add_u32 v26, {MIR}, v24')
    a(f'v_mad_u32_u24 v26, v26, s{s272}, v28')
    a('v_lshl_add_u32 v27, v24, 3, v28')
    a('v_lshrrev_b32 v25, 1, v25')
    a(f's_movk_i32 s{sT}, {NB * 8 - 8}')
    a(f'v_mad_u32_u24 v27, v25, s{sT}, v27')
    a('ds_read_b32 v26, v26 offset:256')
    a('ds_read_b32 v27, v27')
    a('v_lshlrev_b32 v24, 1, v0')
    a('s_waitcnt lgkmcnt(0)')
    a(f'v_fma_f32 v26, v26, s{sC2}, v27')
    a('v_cvt_pk_bf16_f32 v26, v26, v26')
    a(f'buffer_store_short v26, v24, {s(sOUTP, 4)}, 0 offen')
    a('NOPOS:')
    a('s_mov_b64 exec, -1')
    TT = 192
    a(f'v_lshrrev_b32 v26, 5, v{vLANE}')
    a('v_lshlrev_b32 v26, 9, v26')
    a(f'v_and_b32 v27, 31, v{vLANE}')
    a('v_lshl_or_b32 v26, v27, 2, v26')
    a(f's_add_u32 s{sT}, s{sRing}, 4096')
    a(f'v_add_u32 v26, s{sT}, v26')
    a('v_add_u32 v27, 0x400, v26')
    a('v_add_u32 v28, 0x800, v26')
    a('v_add_u32 v29, 0xc00, v26')
    a(f'v_add_u32 v30, s{sT}, v{vLin}')
    for g in range(4):
        for h in range(2):
            a(f'ds_read2_b32 {v(D[1] + 4 * g + 2 * h, 2)}, v{26 + g} offset0:{64 * h} offset1:{64 * h + 32}')
    for g in range(4):
        regs = [Z0 + 4 * g + r for r in range(4)] + [Z0 + 16 + 4 * g + r for r in range(4)]
        if g == 3:
            a(f's_cmp_ge_u32 s{sW}, 2')
            a('s_cbranch_scc1 EP3')
        for i, y in enumerate(regs):
            a(f'v_exp_f32 v{TT + i}, v{y}')
        if g == 0:
            a('s_waitcnt lgkmcnt(0)')
        for r in range(4):
            hreg = D[1] + 4 * g + r
            a(f'v_lshlrev_b32 v{TT + 8 + r}, 16, v{hreg}')
        for i in range(4):
            a(f'v_pk_add_f32 {v(TT + 2 * i, 2)}, {v(TT + 2 * i, 2)}, 1.0 op_sel_hi:[1,0]')
        for i in range(8):
            a(f'v_rcp_f32 v{TT + i}, v{TT + i}')
            if g > 0 and i == 3:
                a('s_waitcnt lgkmcnt(0)')
                a(f's_add_u32 s{sT2}, s{sOB}, {(g - 1) * 2048}')
                a(f'buffer_store_dwordx4 {v(64 + 4 * (g - 1), 4)}, v{vO}, {s(sOUT, 4)}, s{sT2} offen' + G.sflag2())
        for r in range(4):
            hreg = D[1] + 4 * g + r
            a(f'v_and_b32 v{TT + 12 + r}, 0xffff0000, v{hreg}')
        for i in range(4):
            a(f'v_pk_mul_f32 {v(TT + 2 * i, 2)}, {v(TT + 2 * i, 2)}, {v(regs[2 * i], 2)}')
        for i in range(4):
            a(f'v_pk_fma_f32 {v(TT + 8 + 2 * i, 2)}, {v(TT + 2 * i, 2)}, {s(sC2, 2)}, {v(TT + 8 + 2 * i, 2)}')
        for r in range(4):
            a(f'v_cvt_pk_bf16_f32 v{TT + 16 + r}, v{TT + 8 + r}, v{TT + 12 + r}')
        for h in range(2):
            a(f'ds_write2_b32 v{26 + g}, v{TT + 16 + 2 * h}, v{TT + 17 + 2 * h} offset0:{64 * h} offset1:{64 * h + 32}')
        a(f'ds_read_b128 {v(64 + 4 * g, 4)}, v30 offset:{g * 1024}')
    a(f's_add_u32 s{sT2}, s{sOB}, {3 * 2048}')
    a('s_waitcnt lgkmcnt(0)')
    a(f'buffer_store_dwordx4 {v(64 + 12, 4)}, v{vO}, {s(sOUT, 4)}, s{sT2} offen' + G.sflag2())
    a('s_branch K2_FIN')
    a('EP3:')
    a(f's_add_u32 s{sT2}, s{sOB}, {2 * 2048}')
    a('s_waitcnt lgkmcnt(0)')
    a(f'buffer_store_dwordx4 {v(64 + 8, 4)}, v{vO}, {s(sOUT, 4)}, s{sT2} offen' + G.sflag2())
    a('K2_FIN:')
    if OPT.get('stamps'):
        stamp(a)
        srd(a, sTT, 24, 0x2000000, 0x100000)
        a(f's_lshl_b32 s{sT}, s{sBin}, 3')
        a(f's_add_u32 s{sT}, s{sT}, s{sW}')
        a(f's_lshl_b32 s{sT}, s{sT}, 6')
        a('s_mov_b64 exec, 1')
        a('v_mov_b32 v24, 0')
        for i in range(12):
            a(f'v_mov_b32 v25, s{88 + i}')
            a(f'buffer_store_dword v25, v24, {s(sTT, 4)}, s{sT} offen offset:{4 * i}')
        a(f's_getreg_b32 s{sT2}, hwreg(HW_REG_HW_ID)')
        a(f'v_mov_b32 v25, s{sT2}')
        a(f'buffer_store_dword v25, v24, {s(sTT, 4)}, s{sT} offen offset:48')
        a(f'v_mov_b32 v25, s{sL}')
        a(f'buffer_store_dword v25, v24, {s(sTT, 4)}, s{sT} offen offset:56')
        a(f'v_mov_b32 v25, s{sBatch}')
        a(f'buffer_store_dword v25, v24, {s(sTT, 4)}, s{sT} offen offset:60')
        a('s_waitcnt vmcnt(0)')
        a('s_memrealtime s[100:101]')
        a('s_waitcnt lgkmcnt(0)')
        a('v_mov_b32 v25, s100')
        a(f'buffer_store_dword v25, v24, {s(sTT, 4)}, s{sT} offen offset:52')
    a('K2_END:')
    a('s_endpgm')
    gen_slow(a)


def gen_slow(a):
    a('SLOW_ENTRY:')
    a(f's_mov_b32 s{sSlow}, 1')
    a(f's_mov_b32 s{sBatch}, 0')
    z0_gemm(a)
    scale32(a, Z0)
    a('SLOW_BATCH:')
    table_load(a)
    a(f's_add_u32 s{sFlagV}, s{sBatch}, 1')
    a('v_lshlrev_b32 v24, 2, v0')
    a('v_mov_b32 v25, 0')
    a('v_cmpx_gt_u32 vcc, 0x100, v0')
    a(f'ds_write_b32 v24, v25 offset:{HIST}')
    a('s_mov_b64 exec, -1')
    a('v_lshrrev_b32 v24, 1, v0')
    a(f's_movk_i32 s{sT}, {CH}')
    a('s_waitcnt vmcnt(0)')
    a(f'v_and_b32 v26, 0xffff, v{vTab}')
    a(f'v_mad_u32_u24 v26, v24, s{sT}, v26')
    a(f'v_lshrrev_b32 v25, 16, v{vTab}')
    a('v_lshlrev_b32 v24, 2, v24')
    a(f'ds_write_b32 v24, v25 offset:{SEGL}')
    a(f'ds_write_b32 v24, v26 offset:{SEGS}')
    a('s_waitcnt lgkmcnt(0)')
    a('s_barrier')
    a(f'ds_read_b128 v[128:131], v{vLin} offset:{SEGL}')
    a('s_waitcnt lgkmcnt(0)')
    a('v_add_u32 v129, v128, v129')
    a('v_add_u32 v130, v129, v130')
    a('v_add_u32 v131, v130, v131')
    a('v_mov_b32 v132, v131')
    scan64(a, 132)
    a(f'v_readlane_b32 s{sLtot}, v132, 63')
    a('v_sub_u32 v136, v132, v131')
    a('v_add_u32 v137, v136, v128')
    a('v_add_u32 v138, v136, v129')
    a('v_add_u32 v139, v136, v130')
    a(f'ds_write_b128 v{vLin}, v[136:139] offset:{SEGC}')
    a(f's_lshl_b32 s{sT}, s{sBatch}, 10')
    a(f'v_add_u32 v140, s{sT}, v0')
    a('v_add_u32 v141, 0x200, v140')
    a('v_mov_b32 v142, 0')
    a('v_mov_b32 v143, 0')
    for st in (128, 64, 32, 16, 8, 4, 2, 1):
        for h in range(2):
            a(f'v_add_u32 v{144 + h}, {4 * st}, v{142 + h}')
            a(f'ds_read_b32 v{146 + h}, v{144 + h} offset:{SEGC}')
        a('s_waitcnt lgkmcnt(0)')
        for h in range(2):
            a(f'v_cmp_le_u32 vcc, v{146 + h}, v{140 + h}')
            a(f'v_cndmask_b32 v{142 + h}, v{142 + h}, v{144 + h}, vcc')
    for h in range(2):
        a(f'ds_read_b32 v{144 + h}, v{142 + h} offset:{SEGC}')
        a(f'ds_read_b32 v{146 + h}, v{142 + h} offset:{SEGS}')
    a(f'v_mov_b32 v{vRem}, 0')
    a('s_waitcnt lgkmcnt(0)')
    for h in range(2):
        a(f'v_sub_u32 v{144 + h}, v{140 + h}, v{144 + h}')
        a(f'v_add_lshl_u32 v{144 + h}, v{144 + h}, v{146 + h}, 3')
        a(f'v_cmpx_gt_u32 vcc, s{sLtot}, v{140 + h}')
        a(f'v_mov_b32 v{vRem}, {h + 1}')
        a(f'buffer_load_dwordx2 {v(128 + 2 * h, 2)}, v{144 + h}, {s(sREC, 4)}, 0 offen')
    a('s_mov_b64 exec, -1')
    a('s_waitcnt vmcnt(0)')
    hist(a, slots_slow(), 'S')
    a('s_waitcnt lgkmcnt(0)')
    a('s_barrier')
    a(f'ds_read_b128 v[136:139], v{vLin} offset:{HIST}')
    a('s_waitcnt lgkmcnt(0)')
    a('v_add_u32 v137, v136, v138')
    a('v_mov_b32 v139, v137')
    scan64(a, 139)
    a('v_sub_u32 v140, v139, v137')
    a('v_mov_b32_dpp v141, v140 quad_perm:[0,0,0,0] row_mask:0xf bank_mask:0xf')
    a('v_mov_b32_dpp v142, v139 quad_perm:[3,3,3,3] row_mask:0xf bank_mask:0xf')
    a('v_sub_u32 v140, v140, v141')
    a('v_sub_u32 v142, v142, v141')
    a('v_add_u32 v143, 31, v142')
    a('v_and_b32 v143, -32, v143')
    a(f'v_and_b32 v144, 3, v{vLANE}')
    a('v_cmp_eq_u32 vcc, 0, v144')
    a('v_cndmask_b32 v144, 0, v143, vcc')
    scan64(a, 144)
    a(f'v_readlane_b32 s{sL}, v144, 63')
    a('v_sub_u32 v145, v144, v143')
    a('v_add_u32 v146, v145, v140')
    a(f'v_add_u32 v146, {REC // 8}, v146')
    a('v_add_u32 v147, v146, v136')
    a(f'v_add_u32 v148, {HIST}, v{vLin}')
    a('ds_write2_b32 v148, v146, v147 offset0:1 offset1:3')
    a('v_add_u32 v145, v145, v142')
    a('v_mov_b32 v148, 0')
    for g in range(13):
        a(f'v_readlane_b32 s{sT}, v145, {4 * g}')
        a(f'v_readlane_b32 s{sT2}, v144, {4 * g}')
        a(f'v_mov_b32 v149, {0x7f000000 | (min(8 * g + 7, NB - 1) << 3):#x}')
        a(f'v_add_u32 v24, s{sT}, v{vLANE}')
        a(f'v_cmpx_gt_u32 vcc, s{sT2}, v24')
        a(f'v_add_u32 v24, {REC // 8}, v24')
        a('v_lshlrev_b32 v24, 3, v24')
        a('ds_write_b64 v24, v[148:149]')
        a('s_mov_b64 exec, -1')
    scatter1(a, slots_slow(), 'S')
    a('s_waitcnt lgkmcnt(0)')
    scatter2(a, slots_slow(), 'S')
    a('s_waitcnt lgkmcnt(0)')
    a('s_barrier')
    a('s_branch AFTER_B3')
```

```python
import sys, os
sys.path.insert(0, os.path.dirname(os.path.abspath(__file__)))
from asmlib import Asm, pad, v, s

N = 25000
E = 400000
NB = 98
CH = 1568
NCH = 256
NL2E = 0xBFB8AA3B
NLN2 = 0xBF317218

WS_Q = 0
WS_REC = 0x640000
WS_TAB = 0x980000
WS_WF = 0x9C0000
WF_CST = 3 * 32768
WF_WX = WF_CST + 1024
WF_SIZE = WF_WX + 256
WS_POSF = 0xA00000

OPT = dict(stamps=False)


def srd(a, d, base, off, size):
    if off == 0:
        a(f's_mov_b32 s{d}, s{base}')
        a(f's_mov_b32 s{d + 1}, s{base + 1}')
    else:
        a(f's_add_u32 s{d}, s{base}, {off}')
        a(f's_addc_u32 s{d + 1}, s{base + 1}, 0')
    a(f's_mov_b32 s{d + 2}, {size}')
    a(f's_mov_b32 s{d + 3}, 0x20000')


def scan64(a, r):
    for sh in (1, 2, 4, 8):
        a(f'v_add_u32_dpp v{r}, v{r}, v{r} row_shr:{sh} row_mask:0xf bank_mask:0xf bound_ctrl:1')
    a(f'v_add_u32_dpp v{r}, v{r}, v{r} row_bcast:15 row_mask:0xa bank_mask:0xf')
    a(f'v_add_u32_dpp v{r}, v{r}, v{r} row_bcast:31 row_mask:0xc bank_mask:0xf')


def mfma(a, d, A, B, C=None):
    c = '0' if C is None else v(C, 16)
    a(f'v_mfma_f32_32x32x16_bf16 {v(d, 16)}, {v(A, 4)}, {v(B, 4)}, {c}')


_st = [0]


def stamp1(a, real=False):
    if not OPT.get('stamps'):
        return
    i = _st[0]
    _st[0] += 1
    a('s_memrealtime s[90:91]' if real else 's_memtime s[90:91]')
    a('s_waitcnt lgkmcnt(0)')
    a(f's_mov_b32 s{76 + i}, s90')


def stamp1_out(a):
    if not OPT.get('stamps'):
        return
    a('s_mov_b64 exec, -1')
    a('s_waitcnt vmcnt(0)')
    stamp1(a)
    stamp1(a, True)
    srd(a, 92, 24, 0x2100000, 0x100000)
    a('s_lshl_b32 s90, s2, 3')
    a('s_add_u32 s90, s90, s3')
    a('s_lshl_b32 s90, s90, 6')
    a('s_mov_b64 exec, 1')
    a('v_mov_b32 v24, 0')
    for i in range(12):
        a(f'v_mov_b32 v25, s{76 + i}')
        a(f'buffer_store_dword v25, v24, s[92:95], s90 offen offset:{4 * i}')
    a('s_getreg_b32 s91, hwreg(HW_REG_HW_ID)')
    a('v_mov_b32 v25, s91')
    a('buffer_store_dword v25, v24, s[92:95], s90 offen offset:48')
    a('s_getreg_b32 s91, hwreg(HW_REG_XCC_ID)')
    a('v_mov_b32 v25, s91')
    a('buffer_store_dword v25, v24, s[92:95], s90 offen offset:52')


def sflag():
    return {0: '', 1: ' sc1', 2: ' sc0 sc1', 3: ' nt', 4: ' sc1 nt'}[OPT.get('wt', 1)]


def sflag2():
    import sys
    o = sys.modules['__main__'].OPT if hasattr(sys.modules['__main__'], 'OPT') else OPT
    return {0: '', 1: ' sc1', 2: ' sc0 sc1', 3: ' nt', 4: ' sc1 nt'}[o.get('wt2', 0)]


def gen_k1(a):
    HIST = 0
    SORT = 2048
    HL = 0
    WL = 32768
    a('k1_kernel:')
    a('s_cmp_ge_u32 s2, 512')
    a('s_cbranch_scc1 K1_END')
    _st[0] = 0
    stamp1(a, True)
    stamp1(a)
    a('s_load_dwordx16 s[4:19], s[0:1], 0')
    a('s_load_dwordx2 s[24:25], s[0:1], 80')
    a('v_lshrrev_b32 v1, 6, v0')
    a('v_and_b32 v2, 63, v0')
    a('v_readfirstlane_b32 s3, v1')
    a('s_cmp_ge_u32 s2, 256')
    a('s_cbranch_scc1 K1_GEMM')
    a('v_lshlrev_b32 v3, 2, v0')
    a('v_mov_b32 v4, 0')
    a(f'ds_write_b32 v3, v4 offset:{HIST}')
    a(f's_mul_i32 s26, s2, {CH}')
    a(f's_sub_u32 s27, {E}, s26')
    a('s_lshr_b32 s27, s27, 2')
    a(f's_min_u32 s27, s27, {CH // 4}')
    a('v_cmp_gt_u32 s[42:43], s27, v0')
    a('v_lshlrev_b32 v5, 4, v0')
    a('v_lshlrev_b32 v6, 3, v0')
    a('s_lshl_b32 s44, s26, 2')
    a('s_lshl_b32 s45, s26, 1')
    a('s_waitcnt lgkmcnt(0)')
    stamp1(a)
    srd(a, 28, 12, 0, E * 4)
    srd(a, 32, 10, 0, E * 4)
    srd(a, 36, 8, 0, E * 2)
    a('s_mov_b64 exec, s[42:43]')
    a('s_cbranch_execz K1_NOLOAD')
    a('buffer_load_dwordx4 v[8:11], v5, s[28:31], s44 offen')
    a('buffer_load_dwordx4 v[12:15], v5, s[32:35], s44 offen')
    a('buffer_load_dwordx2 v[16:17], v6, s[36:39], s45 offen')
    a('K1_NOLOAD:')
    a('s_mov_b64 exec, -1')
    srd(a, 48, 24, WS_REC, NCH * CH * 8)
    srd(a, 52, 24, WS_TAB, NCH * 1024)
    a('s_cmp_lg_u32 s3, 7')
    a('s_cbranch_scc1 K1_NOPREP')
    a('s_cmp_gt_u32 s2, 97')
    a('s_cbranch_scc1 K1_NOPREP')
    gen_prep(a)
    a('K1_NOPREP:')
    a('s_barrier')
    stamp1(a)
    a('s_mov_b64 exec, s[42:43]')
    a('s_cbranch_execz K1_NOHIST')
    a('s_movk_i32 s46, 10700')
    a(f's_movk_i32 s47, {-NB}')
    a('v_mov_b32 v7, 1')
    a('s_waitcnt vmcnt(2)')
    for i in range(4):
        a(f'v_mul_u32_u24 v{20 + i}, s46, v{8 + i}')
        a(f'v_lshrrev_b32 v{20 + i}, 20, v{20 + i}')
        a(f'v_lshlrev_b32 v{24 + i}, 3, v{20 + i}')
        a(f'ds_add_rtn_u32 v{28 + i}, v{24 + i}, v7 offset:{HIST}')
    for i in range(4):
        a(f'v_mad_i32_i24 v{8 + i}, v{20 + i}, s47, v{8 + i}')
        a(f'v_lshlrev_b32 v{8 + i}, 3, v{8 + i}')
    a('s_waitcnt vmcnt(0)')
    for i in range(4):
        a(f'v_lshl_or_b32 v{33 + 2 * i}, v{12 + i}, 16, v{8 + i}')
        if i % 2 == 0:
            a(f'v_lshlrev_b32 v{32 + 2 * i}, 16, v{16 + i // 2}')
        else:
            a(f'v_and_b32 v{32 + 2 * i}, 0xffff0000, v{16 + i // 2}')
    a('K1_NOHIST:')
    a('s_mov_b64 exec, -1')
    a('s_waitcnt lgkmcnt(0)')
    stamp1(a)
    a('s_barrier')
    stamp1(a)
    a('v_lshlrev_b32 v3, 5, v2')
    a(f'ds_read_b128 v[40:43], v3 offset:{HIST}')
    a(f'ds_read_b128 v[44:47], v3 offset:{HIST + 16}')
    a('s_waitcnt lgkmcnt(0)')
    a('v_add_u32 v41, v40, v42')
    a('v_add_u32 v43, v41, v44')
    a('v_add_u32 v45, v43, v46')
    a('v_mov_b32 v47, v45')
    scan64(a, 47)
    a('v_sub_u32 v48, v47, v45')
    a('v_add_u32 v49, v48, v40')
    a('v_add_u32 v50, v48, v41')
    a('v_add_u32 v51, v48, v43')
    a(f'v_add_u32 v3, {HIST}, v3')
    a('ds_write2_b32 v3, v48, v49 offset0:1 offset1:3')
    a('ds_write2_b32 v3, v50, v51 offset0:5 offset1:7')
    a('s_cmp_lg_u32 s3, 7')
    a('s_cbranch_scc1 K1_NOTAB')
    a('v_lshl_or_b32 v52, v40, 16, v48')
    a('v_lshl_or_b32 v53, v42, 16, v49')
    a('v_lshl_or_b32 v54, v44, 16, v50')
    a('v_lshl_or_b32 v55, v46, 16, v51')
    a('v_lshlrev_b32 v3, 4, v2')
    a('s_lshl_b32 s44, s2, 10')
    a('buffer_store_dwordx4 v[52:55], v3, s[52:55], s44 offen')
    a('K1_NOTAB:')
    a('s_mov_b64 exec, s[42:43]')
    a('s_cbranch_execz K1_NOSCAT')
    for i in range(4):
        a(f'ds_read_b32 v{20 + i}, v{24 + i} offset:{HIST + 4}')
    for i in range(4):
        a(f's_waitcnt lgkmcnt({3 - i + i})')
        a(f'v_add_lshl_u32 v{20 + i}, v{20 + i}, v{28 + i}, 3')
        a(f'ds_write_b64 v{20 + i}, v[{32 + 2 * i}:{33 + 2 * i}] offset:{SORT}')
    a('K1_NOSCAT:')
    a('s_mov_b64 exec, -1')
    a('s_waitcnt lgkmcnt(0)')
    a('s_barrier')
    stamp1(a)
    a('v_lshlrev_b32 v5, 4, v0')
    a(f'ds_read_b128 v[8:11], v5 offset:{SORT}')
    a(f'ds_read_b128 v[12:15], v5 offset:{SORT + 8192}')
    a(f's_mul_i32 s44, s2, {CH * 8}')
    a('s_add_u32 s45, s44, 8192')
    a(f'v_cmp_gt_u32 vcc, {CH * 8 // 16 - 512}, v0')
    a('s_waitcnt lgkmcnt(1)')
    a('buffer_store_dwordx4 v[8:11], v5, s[48:51], s44 offen' + sflag())
    a('s_and_saveexec_b64 s[40:41], vcc')
    a('s_cbranch_execz K1_BE')
    a('s_waitcnt lgkmcnt(0)')
    a('buffer_store_dwordx4 v[12:15], v5, s[48:51], s45 offen' + sflag())
    a('K1_BE:')
    stamp1(a)
    stamp1_out(a)
    a('s_endpgm')
    _st[0] = 2
    a('K1_GEMM:')
    a('s_sub_u32 s26, s2, 256')
    if OPT.get('xmap', 1):
        a('s_and_b32 s27, s26, 7')
        a('s_lshl_b32 s27, s27, 5')
        a('s_lshr_b32 s26, s26, 3')
        a('s_add_u32 s26, s26, s27')
    a(f's_mul_i32 s26, s26, {NB}')
    a(f's_sub_u32 s27, {N}, s26')
    a(f's_min_u32 s27, s27, {NB}')
    a('s_lshl_b32 s44, s26, 8')
    a('s_lshl_b32 s45, s27, 8')
    a('v_lshrrev_b32 v4, 4, v2')
    a('s_and_b32 s46, s3, 3')
    a('s_lshl_b32 s46, s46, 2')
    a('v_add_u32 v5, s46, v4')
    a('v_and_b32 v6, 15, v2')
    a('v_xor_b32 v5, v5, v6')
    a('v_lshlrev_b32 v5, 4, v5')
    a('v_lshl_or_b32 v3, v4, 8, v5')
    a('v_bfe_u32 v5, v2, 2, 2')
    a('v_xor_b32 v5, v5, v4')
    a('v_lshlrev_b32 v5, 6, v5')
    a('v_and_b32 v6, 3, v2')
    a('v_lshl_or_b32 v5, v6, 4, v5')
    a('v_lshl_or_b32 v7, v4, 8, v5')
    a('s_waitcnt lgkmcnt(0)')
    stamp1(a)
    srd(a, 28, 4, 's44', 's45')
    srd(a, 32, 14, 128 * 256, 32768)
    srd(a, 36, 24, 's44', 's45')
    a('s_lshl_b32 s47, s3, 10')
    for m in range(3):
        a(f's_add_u32 m0, s47, {HL + m * 8192}')
        a(f's_add_u32 s48, s47, {m * 8192}')
        a('buffer_load_dwordx4 v3, s[28:31], s48 offen lds')
    a('s_cmp_lg_u32 s3, 0')
    a('s_cbranch_scc1 K1_G1')
    a(f's_mov_b32 m0, {HL + 24576}')
    a('s_movk_i32 s48, 24576')
    a('buffer_load_dwordx4 v3, s[28:31], s48 offen lds')
    a('K1_G1:')
    a('s_lshl_b32 s47, s3, 12')
    for m in range(4):
        a(f's_add_u32 m0, s47, {WL + m * 1024}')
        a(f's_add_u32 s48, s47, {m * 1024}')
        a('buffer_load_dwordx4 v7, s[32:35], s48 offen lds')
    srd(a, 40, 6, 0, N * 6)
    a('s_lshl_b32 s48, s26, 4')
    a(f's_add_u32 s48, s48, {WS_POSF}')
    a('s_lshl_b32 s49, s27, 4')
    srd(a, 52, 24, 's48', 's49')
    a('s_cmp_gt_u32 s3, 1')
    a('s_cbranch_scc1 K1_G2')
    a('v_add_u32 v8, s26, v0')
    a('v_mul_u32_u24 v8, 6, v8')
    a('v_and_b32 v9, -4, v8')
    a('buffer_load_dwordx2 v[10:11], v9, s[40:43], 0 offen')
    a('v_lshlrev_b32 v8, 3, v8')
    a('v_lshlrev_b32 v9, 4, v0')
    a('v_mov_b32 v15, 0')
    a('s_waitcnt vmcnt(0)')
    a('v_alignbit_b32 v13, v11, v10, v8')
    a('v_lshrrev_b32 v14, v8, v11')
    a('v_lshlrev_b32 v12, 16, v13')
    a('v_and_b32 v13, 0xffff0000, v13')
    a('v_lshlrev_b32 v14, 16, v14')
    a('buffer_store_dwordx4 v[12:15], v9, s[52:55], 0 offen')
    a('K1_G2:')
    a('s_lshr_b32 s46, s3, 1')
    a('s_and_b32 s47, s3, 1')
    a('v_and_b32 v4, 31, v2')
    a('v_lshrrev_b32 v5, 5, v2')
    a('v_and_b32 v6, 15, v2')
    a('v_xor_b32 v6, v6, v5')
    a('v_lshlrev_b32 v6, 4, v6')
    a('v_lshl_or_b32 v6, v4, 8, v6')
    a('s_lshl_b32 s48, s46, 13')
    a(f's_add_u32 s48, s48, {HL}')
    a('v_add_u32 v16, s48, v6')
    for k in range(1, 8):
        a(f'v_xor_b32 v{16 + k}, {k << 5}, v16')
    a('v_bfe_u32 v6, v2, 2, 2')
    a('v_lshl_add_u32 v8, v5, 3, v6')
    a('v_lshlrev_b32 v8, 8, v8')
    a('v_bfe_u32 v9, v2, 4, 1')
    a('v_lshl_or_b32 v8, v9, 5, v8')
    a('v_and_b32 v9, 3, v2')
    a('v_lshl_or_b32 v8, v9, 3, v8')
    a(f'v_add_u32 v8, {WL}, v8')
    a('s_lshl_b32 s48, s47, 1')
    a('v_xor_b32 v9, s48, v6')
    a('v_lshl_or_b32 v24, v9, 6, v8')
    a('v_xor_b32 v25, 64, v24')
    a('s_lshl_b32 s48, s46, 13')
    a('s_lshl_b32 s49, s47, 7')
    a('s_add_u32 s48, s48, s49')
    a('v_lshlrev_b32 v9, 10, v5')
    a('v_lshl_or_b32 v9, v4, 2, v9')
    a('v_add_u32 v26, s48, v9')
    stamp1(a)
    a('s_waitcnt vmcnt(0)')
    stamp1(a)
    a('s_barrier')
    stamp1(a)
    A0, B0, AC = 32, 64, 96
    for k in range(8):
        a(f'ds_read_b128 {v(A0 + 4 * k, 4)}, v{16 + k}')
        a(f'ds_read_b64_tr_b16 {v(B0 + 4 * k, 2)}, v24 offset:{k * 4096}')
        a(f'ds_read_b64_tr_b16 {v(B0 + 4 * k + 2, 2)}, v24 offset:{k * 4096 + 1024}')
        if k >= 4:
            kk = k - 4
            a('s_waitcnt lgkmcnt(12)')
            mfma(a, AC, A0 + 4 * kk, B0 + 4 * kk, None if kk == 0 else AC)
    for kk in range(4):
        a(f'ds_read_b64_tr_b16 {v(B0 + 4 * kk, 2)}, v25 offset:{kk * 4096}')
        a(f'ds_read_b64_tr_b16 {v(B0 + 4 * kk + 2, 2)}, v25 offset:{kk * 4096 + 1024}')
        a(f's_waitcnt lgkmcnt({3 * (3 - kk) + 2 * (kk + 1)})')
        mfma(a, AC, A0 + 4 * (kk + 4), B0 + 4 * (kk + 4), AC)
    for kk in range(4):
        a(f'ds_read_b64_tr_b16 {v(B0 + 4 * (kk + 4), 2)}, v25 offset:{(kk + 4) * 4096}')
        a(f'ds_read_b64_tr_b16 {v(B0 + 4 * (kk + 4) + 2, 2)}, v25 offset:{(kk + 4) * 4096 + 1024}')
        a('s_waitcnt lgkmcnt(8)')
        mfma(a, AC + 16, A0 + 4 * kk, B0 + 4 * kk, None if kk == 0 else AC + 16)
    for kk in range(4, 8):
        a(f's_waitcnt lgkmcnt({2 * (7 - kk)})')
        mfma(a, AC + 16, A0 + 4 * kk, B0 + 4 * kk, AC + 16)
    stamp1(a)
    a(f's_mov_b32 s48, {NL2E:#x}')
    for i in range(16):
        a(f'v_mul_f32 v{AC + i}, s48, v{AC + i}')
    a('s_movk_i32 s49, 2048')
    a('s_movk_i32 s50, 4096')
    a('s_movk_i32 s51, 6144')
    for i in range(16):
        a(f'v_mul_f32 v{AC + 16 + i}, s48, v{AC + 16 + i}')
        a(f'v_cvt_pk_bf16_f32 v{32 + i}, v{AC + i}, v{AC + 16 + i}')
        so = ['0', 's49', 's50', 's51'][i // 4]
        a(f'buffer_store_dword v{32 + i}, v26, s[36:39], {so} offen offset:{(i % 4) * 256}' + sflag())
    stamp1(a)
    stamp1_out(a)
    a('K1_END:')
    a('s_endpgm')


def gen_prep(a):
    srd(a, 56, 24, WS_WF, WF_SIZE)
    a('v_and_b32 v60, 31, v2')
    a('v_lshrrev_b32 v61, 5, v2')
    a('s_cmp_eq_u32 s2, 96')
    a('s_cbranch_scc1 K1_PCST')
    a('s_cmp_eq_u32 s2, 97')
    a('s_cbranch_scc1 K1_PWX')
    a('s_lshr_b32 s60, s2, 5')
    a('s_bfe_u32 s61, s2, 0x10004')
    a('s_bfe_u32 s62, s2, 0x10003')
    a('s_and_b32 s63, s2, 7')
    a('s_cmp_eq_u32 s60, 0')
    a('s_cselect_b32 s64, s14, s18')
    a('s_cselect_b32 s65, s15, s19')
    a('s_mov_b32 s66, 65536')
    a('s_mov_b32 s67, 0x20000')
    a('s_cselect_b32 s68, 0, 1')
    a('s_cselect_b32 s69, 5, 0')
    a('s_lshl_b32 s69, s62, s69')
    a('s_lshl_b32 s70, s61, 6')
    a('s_add_u32 s69, s69, s70')
    a('v_lshlrev_b32 v62, s68, v60')
    a('v_add_u32 v62, s69, v62')
    a('v_lshlrev_b32 v62, 1, v62')
    a('s_lshl_b32 s70, s63, 4')
    a('s_lshr_b32 s71, s63, 2')
    a('s_lshl_b32 s71, s71, 6')
    a('s_and_b32 s72, s63, 3')
    a('s_lshl_b32 s72, s72, 3')
    a('s_add_u32 s71, s71, s72')
    a('s_add_u32 s71, s71, 128')
    a('s_cmp_eq_u32 s60, 2')
    a('s_cselect_b32 s70, s71, s70')
    a('s_cselect_b32 s71, 9, 11')
    a('v_lshlrev_b32 v63, s71, v61')
    a('s_lshl_b32 s70, s70, 8')
    a('v_add3_u32 v62, v62, v63, s70')
    a('s_cmp_eq_u32 s60, 2')
    for t in range(8):
        tau = 32 * (t & 1) + 4 * (t >> 2) + ((t >> 1) & 1)
        a(f's_mov_b32 s72, {t * 256}')
        a(f's_cselect_b32 s72, {tau * 256}, s72')
        a(f'buffer_load_ushort v{64 + t}, v62, s[64:67], s72 offen')
    a('s_lshl_b32 s70, s2, 10')
    a('v_lshlrev_b32 v62, 4, v2')
    a('s_waitcnt vmcnt(0)')
    for t in range(4):
        a(f'v_lshl_or_b32 v{72 + t}, v{65 + 2 * t}, 16, v{64 + 2 * t}')
    a('buffer_store_dwordx4 v[72:75], v62, s[56:59], s70 offen')
    a('s_branch K1_NOPREP')
    a('K1_PCST:')
    srd(a, 64, 14, 256 * 256, 512)
    a('v_and_b32 v62, 1, v60')
    a('v_lshlrev_b32 v62, 5, v62')
    a('v_lshrrev_b32 v63, 1, v60')
    a('v_add_lshl_u32 v62, v62, v63, 1')
    for b in range(4):
        f0 = 64 * (b >> 1) + 16 * (b & 1)
        a(f'buffer_load_ushort v{64 + 2 * b}, v62, s[64:67], 0 offen offset:{f0 * 2}')
        a(f'buffer_load_ushort v{65 + 2 * b}, v62, s[64:67], 0 offen offset:{256 + f0 * 2}')
    a(f's_mov_b32 s70, {NL2E:#x}')
    a('v_cmp_eq_u32 vcc, 0, v61')
    a('s_waitcnt vmcnt(0)')
    for b in range(4):
        x, y = 64 + 2 * b, 65 + 2 * b
        a(f'v_lshlrev_b32 v{x}, 16, v{x}')
        a(f'v_lshlrev_b32 v{y}, 16, v{y}')
        a(f'v_mul_f32 v76, s70, v{x}')
        a(f'v_mul_f32 v77, s70, v{y}')
        a('v_cvt_pk_bf16_f32 v78, v76, v77')
        a('v_lshlrev_b32 v79, 16, v78')
        a('v_and_b32 v80, 0xffff0000, v78')
        a(f'v_fma_f32 v76, s70, v{x}, -v79')
        a(f'v_fma_f32 v77, s70, v{y}, -v80')
        a('v_cvt_pk_bf16_f32 v79, v76, v77')
        a(f'v_cndmask_b32 v{72 + b}, v79, v78, vcc')
    a('v_lshlrev_b32 v62, 4, v2')
    a(f's_mov_b32 s70, {WF_CST}')
    a('buffer_store_dwordx4 v[72:75], v62, s[56:59], s70 offen')
    a('s_branch K1_NOPREP')
    a('K1_PWX:')
    srd(a, 64, 16, 0, 256)
    a('v_bfe_u32 v62, v2, 3, 1')
    a('v_lshlrev_b32 v62, 6, v62')
    a('v_bfe_u32 v63, v2, 1, 2')
    a('v_lshl_or_b32 v62, v63, 3, v62')
    a('v_and_b32 v63, 1, v2')
    a('v_lshl_or_b32 v62, v63, 1, v62')
    a('v_lshlrev_b32 v62, 1, v62')
    for t in range(8):
        tau = 32 * (t & 1) + 4 * (t >> 2) + ((t >> 1) & 1)
        a(f'buffer_load_ushort v{64 + t}, v62, s[64:67], 0 offen offset:{tau * 2}')
    a('v_lshlrev_b32 v62, 4, v2')
    a(f's_mov_b32 s70, {WF_WX}')
    a('s_waitcnt vmcnt(0)')
    for t in range(4):
        a(f'v_lshl_or_b32 v{72 + t}, v{65 + 2 * t}, 16, v{64 + 2 * t}')
    a('buffer_store_dwordx4 v[72:75], v62, s[56:59], s70 offen')


def kd(name, vgpr, sgpr):
    return f'''.section .rodata,"a"
.p2align 6
.amdhsa_kernel {name}
  .amdhsa_next_free_vgpr {vgpr}
  .amdhsa_next_free_sgpr {sgpr}
  .amdhsa_accum_offset {(vgpr + 3) // 4 * 4}
  .amdhsa_group_segment_fixed_size 0
  .amdhsa_kernarg_size 88
  .amdhsa_user_sgpr_count 2
  .amdhsa_user_sgpr_kernarg_segment_ptr 1
  .amdhsa_system_sgpr_workgroup_id_x 1
  .amdhsa_float_denorm_mode_32 3
.end_amdhsa_kernel
'''


HEADER = '''; EGNN layer: k1 bins the edges by destination tile and computes Q = h @ w_e[128:256];
'''


def build(only_k1=False, verbose=False):
    from gen_k2 import gen_k2, K2_LDS
    out = HEADER
    out += '; @launch kernel=k1_kernel grid=(512,1,1) block=(512,1,1) lds=65536\n'
    if not only_k1:
        out += f'; @launch kernel=k2_kernel grid=(256,1,1) block=(512,1,1) lds={K2_LDS}\n'
    out += '.amdgcn_target "amdgcn-amd-amdhsa--gfx950"\n.text\n'
    a = Asm()
    gen_k1(a)
    out += '.globl k1_kernel\n.p2align 8\n.type k1_kernel,@function\n' + '\n'.join(pad(a.lines, verbose)) + '\n'
    if not only_k1:
        a = Asm()
        gen_k2(a)
        out += '.globl k2_kernel\n.p2align 8\n.type k2_kernel,@function\n' + '\n'.join(pad(a.lines, verbose)) + '\n'
    out += kd('k1_kernel', 128, 96 if OPT.get('stamps') else 80)
    if not only_k1:
        out += kd('k2_kernel', 256, 102)
    return out


if __name__ == '__main__':
    path = sys.argv[1] if len(sys.argv) > 1 else 'gather_scatter__cheap_equivariant_egnn__graph.s'
    for x in sys.argv[2:]:
        if '=' in x:
            k, val = x.split('=')
            OPT[k] = int(val)
    txt = build(only_k1='k1' in sys.argv[2:], verbose='-v' in sys.argv)
    open(path, 'w').write(txt)
    print('wrote', path, len(txt), 'bytes')
```
